```python
import torch

def _softmax(x, axis=-1):
    return torch.softmax(x, dim=axis)
def _gelu(x):
    return torch.nn.functional.gelu(x, approximate="tanh")
def _silu(x):
    return torch.nn.functional.silu(x)
def _sigmoid(x):
    return torch.sigmoid(x)
def _layernorm(x, axis=-1, eps=1e-5):
    m = x.mean(dim=axis, keepdim=True)
    v = x.var(dim=axis, keepdim=True, unbiased=False)
    return (x - m) / torch.sqrt(v + eps)
def _scatter_add(tgt, idx, src, axis=0):
    return tgt.clone().index_add_(axis, idx, src)
def _segment_sum(src, seg, n):
    out = torch.zeros((n,) + src.shape[1:], dtype=src.dtype)
    return out.index_add_(0, seg, src)
def _pad(x, pw):
    flat = tuple(v for pair in reversed(pw) for v in pair)
    return torch.nn.functional.pad(x, flat)

kernel_name = 'sequential_preLN__sliding_block_cached__dense_activation_relu__decode'

def setup_inputs():

    _w = (lambda a: (lambda t: t.to(torch.bfloat16) if t.is_floating_point() else t)(torch.as_tensor(a)))
    def _A_setup():
        B, Sq, D = 1, 1, 576
        Hq, Hkv, Sk, Dh = 32, 16, 65536, 128
        assert Hq % Hkv == 0, (Hq, Hkv)
        return {
            "x": _w((lambda *s: torch.randn(*s, dtype=torch.bfloat16) * 0.05)(B, Sq, D)),
            "k_cache": _w((lambda *s: torch.randn(*s, dtype=torch.bfloat16) * 3.2)(B, Hkv, Sk, Dh)),
            "v_cache": _w((lambda *s: torch.randn(*s, dtype=torch.bfloat16) * 0.4)(B, Hkv, Sk, Dh)),
            "wq": _w((lambda *s: torch.randn(*s, dtype=torch.bfloat16) * 3.2)(D, Hq * Dh) * (D ** -0.5)),
            "wo": _w((lambda *s: torch.randn(*s, dtype=torch.bfloat16) * 0.4)(Hq * Dh, D) * ((Hq * Dh) ** -0.5)),
        }
    _A_in = _A_setup()

    def _B_setup():
        B, S, D, Dff = 1, 1, 576, 4608
        return {
            "x": _w((lambda *s: torch.randn(*s, dtype=torch.bfloat16) * 0.05)(B, S, D)),
            "w1": _w((lambda *s: torch.randn(*s, dtype=torch.bfloat16) * 0.05)(D, Dff)),
            "w2": _w((lambda *s: torch.randn(*s, dtype=torch.bfloat16) * 0.05)(Dff, D)),
        }
    _B_in = _B_setup()

    return {
        "A_x": _A_in["x"],
        "A_k_cache": _A_in["k_cache"],
        "A_v_cache": _A_in["v_cache"],
        "A_wq": _A_in["wq"],
        "A_wo": _A_in["wo"],
        "B_x": _B_in["x"],
        "B_w1": _B_in["w1"],
        "B_w2": _B_in["w2"],
    }

def reference(A_x, A_k_cache, A_v_cache, A_wq, A_wo, B_x, B_w1, B_w2):
    def _A_ref(x, k_cache, v_cache, wq, wo):
        B, Sq, D = x.shape
        Hq, Dh = 32, 128
        Hkv, Sk = k_cache.shape[1], k_cache.shape[2]
        W = min(4096, max(256, Sk // 4))
        rep = Hq // Hkv
        q = (lambda x, *d: x.permute(*d))((x @ wq).reshape(B, Sq, Hq, Dh), 0, 2, 1, 3)
        k = (lambda x, n, axis: torch.repeat_interleave(x, n, dim=axis))(k_cache[:, :, Sk - W:, :], rep, axis=1)
        v = (lambda x, n, axis: torch.repeat_interleave(x, n, dim=axis))(v_cache[:, :, Sk - W:, :], rep, axis=1)
        scores = torch.einsum("bhqd,bhkd->bhqk", q, k) * (Dh ** -0.5)
        p = _softmax(scores, axis=-1)
        o = torch.einsum("bhqk,bhkd->bhqd", p, v)
        return (lambda x, *d: x.permute(*d))(o, 0, 2, 1, 3).reshape(B, Sq, Hq * Dh) @ wo

    def _B_ref(x, w1, w2):
        h = torch.einsum("bsd,df->bsf", x, w1)
        zero = torch.zeros_like(h)
        h = torch.maximum(h, zero)
        return torch.einsum("bsf,fd->bsd", h, w2)

    x = A_x
    h = x + _A_ref(_layernorm(x, axis=-1), A_k_cache, A_v_cache, A_wq, A_wo)
    h2 = h + _B_ref(_layernorm(h, axis=-1), B_w1, B_w2)
    return h2
```

```python
import re
TRANS = ("v_exp_f32", "v_log_f32", "v_rcp_f32", "v_rsq_f32", "v_sqrt_f32", "v_sin_f32", "v_cos_f32")
def regs(op):
    op = op.strip().lstrip("-")
    op = re.sub(r"^abs\((.*)\)$", r"\1", op).strip("|")
    m = re.fullmatch(r"([vsa])\[(\d+):(\d+)\]", op)
    if m: return [f"{m.group(1)}{i}" for i in range(int(m.group(2)), int(m.group(3)) + 1)]
    if re.fullmatch(r"[vsa]\d+", op): return [op]
    if op == "vcc": return ["vcc"]
    if op in ("exec", "exec_lo", "exec_hi"): return ["exec"]
    if op == "m0": return ["m0"]
    return []
def parse(line):
    line = line.split(";")[0].strip()
    if not line or line.endswith(":") or line.startswith((".", "@")): return None
    parts = line.split(None, 1); mn = parts[0]
    ops = []
    if len(parts) > 1:
        rest = re.sub(r"quad_perm:\[[^\]]*\]|op_sel\w*:\[[^\]]*\]|neg_\w*:\[[^\]]*\]", "", parts[1])
        ops = [o.strip().split()[0] if o.strip() else "" for o in rest.split(",")]
    d = dict(mn=mn, line=line, dst=[], src=[], kind="other")
    R = [regs(o) for o in ops]
    flat = lambda l: [x for y in l for x in y]
    if mn.startswith("v_mfma"):
        d.update(kind="mfma", dst=R[0], src=flat(R[1:]), A=R[1], B=R[2], C=R[3])
    elif mn.startswith("v_"):
        d["kind"] = "valu"
        if mn.startswith("v_permlane"): d.update(dst=R[0] + R[1], src=R[0] + R[1], perm=True)
        elif mn.startswith("v_cmp"): d.update(dst=R[0], src=flat(R[1:]))
        elif mn.startswith(("v_add_co", "v_addc_co", "v_div_scale")): d.update(dst=R[0] + R[1], src=flat(R[2:]))
        else:
            d.update(dst=R[0], src=flat(R[1:]))
            if mn.startswith(("v_fmac", "v_writelane")) or "_dpp" in mn and "row_mask:0xf" not in line: d["src"] = d["src"] + R[0]
        d["dpp"] = "_dpp" in mn
        d["trans"] = mn.replace("_e32", "").replace("_e64", "") in TRANS
        d["rl"] = mn.startswith(("v_readlane", "v_readfirstlane"))
    elif mn.startswith(("global_load_lds", "buffer_load")) and ("lds" in line):
        d.update(kind="vmem", src=flat(R) + ["m0"], dma=True)
    elif mn.startswith(("global_load", "buffer_load")):
        d.update(kind="vmem", dst=R[0], src=flat(R[1:]))
    elif mn.startswith(("global_store", "buffer_store", "global_atomic")):
        d.update(kind="vmem", src=flat(R))
        if "x4" in mn or "x3" in mn: d["wide"] = R[1] if mn.startswith("global") else R[0]
    elif mn.startswith("ds_"):
        d["kind"] = "ds"
        if mn.startswith(("ds_read", "ds_bpermute", "ds_swizzle", "ds_permute")): d.update(dst=R[0], src=flat(R[1:]))
        else: d.update(src=flat(R))
    elif mn.startswith("s_"):
        d["kind"] = "salu"
        if mn.startswith(("s_cmp", "s_cbranch", "s_branch", "s_waitcnt", "s_barrier", "s_nop", "s_endpgm", "s_setprio", "s_sleep")): d.update(src=flat(R))
        else: d.update(dst=R[0] if R else [], src=flat(R[1:]))
    return d
def need(p, c):
    n = 0
    pd, cs, cd = set(p["dst"]), set(c["src"]), set(c["dst"])
    if p["kind"] == "valu":
        vd = {r for r in pd if r[0] == "v" and r != "vcc"}; sd = pd - vd
        if vd & cs:
            if c["kind"] == "valu":
                if c.get("dpp") or c.get("perm"): n = max(n, 2)
                if c.get("rl"): n = max(n, 1)
                if p.get("trans") and not c.get("trans"): n = max(n, 1)
                if p.get("trans") and c.get("trans"): n = max(n, 1)
            if c["kind"] == "mfma": n = max(n, 2)
        if sd & cs:
            if c["kind"] == "valu": n = max(n, 4 if c["mn"].startswith(("v_readlane", "v_writelane")) else 2)
            if c["kind"] == "vmem": n = max(n, 5)
    if p["kind"] == "mfma":
        if c["kind"] == "mfma":
            if pd & (set(c["A"]) | set(c["B"])): n = max(n, 8)
            if pd & set(c["C"]) and p["dst"] != c["C"]: n = max(n, 6)
        elif c["kind"] in ("valu", "vmem", "ds") and pd & (cs | cd): n = max(n, 8)
        if c["kind"] == "valu" and set(p["C"]) & cd: n = max(n, 3)
    if p.get("wide") and set(p["wide"]) & cd and c["kind"] != "salu": n = max(n, 2)
    if p["kind"] == "salu" and "m0" in pd and c.get("dma"): n = max(n, 1)
    return n
def pad(lines):
    out = []; hist = []
    for line in lines:
        c = parse(line)
        if c is None:
            out.append(line); continue
        req = 0
        for p, dist in hist: req = max(req, need(p, c) - dist)
        if req > 0:
            out.append(f"s_nop {req-1}"); hist = [(p, d + req) for p, d in hist]
        out.append(line)
        k = 1
        if c["mn"] == "s_nop": k = int(line.split()[1]) + 1
        hist = [(p, d + k) for p, d in hist if d + k < 10] + [(c, 0)]
    return out
```

```python
import sys
from asmlib import pad
KN = "sequential_preLN__sliding_block_cached__dense_activation_relu__decode_kernel"
WS_A, WS_B, WS_BS, WS_C1, WS_C2, WS_D = 0x1000, 0x40000, 0x90000, 0x100000, 0x180000, 0x200000
L_XN, L_Q, L_MAX, L_L, L_Z, L_XF, L_HN, L_Y, L_H1, L_PV, L_W = 0, 2560, 3072, 3136, 3328, 3456, 4096, 6144, 8192, 12288, 20480
L_W2 = L_W + 9 * 6144
LDS = L_W2 + 9 * 6144
SPIN = 30000
LOG2E = "0x3fb8aa3b"
DPP = "row_mask:0xf bank_mask:0xf"
TS = ["start", "wq_iss", "x", "qpub", "qgot", "B2", "B4", "Bpub", "Bgot", "B5", "C1pub", "C1got", "C2pub", "C2got", "Dpub", "end"]

def gen(diag=False, N1_WO=4, N1_MLP=4, dbgts=None):
    L = []; e = L.append
    def ts(name):
        if diag: i = TS.index(name); e(f"s_memrealtime s[{64+2*i}:{65+2*i}]")
    def sadd(d, a, off):
        e(f"s_add_u32 s{d}, s{a}, {off}"); e(f"s_addc_u32 s{d+1}, s{a+1}, 0")
    def v4(r): return f"v[{r}:{r+3}]"
    def v2(r): return f"v[{r}:{r+1}]"
    def wave_sum2(a, b, sa, sb):
        for r in (8, 4, 2, 1):
            for x in (a, b):
                if x is not None: e(f"v_add_f32_dpp v{x}, v{x}, v{x} row_ror:{r} {DPP}")
        for x in (a, b):
            if x is not None: e(f"v_add_f32_dpp v{x}, v{x}, v{x} row_bcast:15 row_mask:0xa bank_mask:0xf")
        for x in (a, b):
            if x is not None: e(f"v_add_f32_dpp v{x}, v{x}, v{x} row_bcast:31 row_mask:0xc bank_mask:0xf")
        e(f"v_readlane_b32 s{sa}, v{a}, 63")
        if b is not None: e(f"v_readlane_b32 s{sb}, v{b}, 63")
    def rbf(d, s):
        e(f"v_cvt_pk_bf16_f32 v{d}, v{s}, v{s}"); e(f"v_and_b32 v{d}, s39, v{d}")
    def layernorm(X, T):
        e(f"v_add_f32 v{T}, v{X}, v{X+1}")
        for i in range(2, 9): e(f"v_add_f32 v{T}, v{T}, v{X+i}")
        wave_sum2(T, None, 46, None)
        e(f"v_mov_b32 v{T+1}, 0x3ae38e39")
        e(f"v_mul_f32 v{T+1}, s46, v{T+1}")
        for i in range(9): e(f"v_sub_f32 v{T+2+i}, v{X+i}, v{T+1}")
        e(f"v_mul_f32 v{T}, v{T+2}, v{T+2}")
        for i in range(1, 9): e(f"v_fmac_f32 v{T}, v{T+2+i}, v{T+2+i}")
        rbf(T + 1, T + 1)
        wave_sum2(T, None, 46, None)
        for i in range(9): e(f"v_sub_f32 v{X+i}, v{X+i}, v{T+1}")
        e(f"v_mov_b32 v{T}, 0x3ae38e39"); e(f"v_mul_f32 v{T}, s46, v{T}")
        rbf(T, T)
        e(f"v_add_f32 v{T}, 0x3727c5ac, v{T}")
        rbf(T, T)
        e(f"v_sqrt_f32 v{T}, v{T}")
        for i in range(0, 8, 2):
            e(f"v_cvt_pk_bf16_f32 v{T+2}, v{X+i}, v{X+i+1}"); e(f"v_lshlrev_b32 v{X+i}, 16, v{T+2}"); e(f"v_and_b32 v{X+i+1}, s39, v{T+2}")
        rbf(X + 8, X + 8)
        rbf(T, T)
        e(f"v_rcp_f32 v{T+1}, v{T}")
        for i in range(9): e(f"v_mul_f32 v{T+2+i}, v{X+i}, v{T+1}")
        for i in range(9): e(f"v_fma_f32 v{X+i}, -v{T+2+i}, v{T}, v{X+i}")
        for i in range(9): e(f"v_fma_f32 v{X+i}, v{X+i}, v{T+1}, v{T+2+i}")
    def poll(name, loads, check, vt, cmp):
        e("s_mov_b32 s30, 0")
        e(f"L_poll_{name}:")
        for l in loads: e(l)
        e("s_add_u32 s30, s30, 1"); e(f"s_cmp_gt_u32 s30, {SPIN}"); e("s_cbranch_scc1 L_end")
        e("s_waitcnt vmcnt(0)")
        acc = vt; first = True; c = list(check)
        while c:
            if first: e(f"v_bitop3_b32 v{acc}, v{c[0]}, v{c[1]}, s28 bitop3:0x7e"); c = c[2:]; first = False
            else: e(f"v_bitop3_b32 v{acc}, v{c[0]}, s28, v{acc} bitop3:0xbe"); c = c[1:]
        if cmp == 32: e(f"v_cmp_ne_u32 vcc, 0, v{acc}")
        elif cmp == 16: e(f"v_cmp_ne_u16 vcc, 0, v{acc}")
        else: e(f"v_and_b32 v{acc}, 0xff, v{acc}"); e(f"v_cmp_ne_u32 vcc, 0, v{acc}")
        e(f"s_cbranch_vccnz L_poll_{name}")
    def dma(voff, sb, lds):
        e(f"s_mov_b32 m0, {lds}" if isinstance(lds, int) else f"s_mov_b32 m0, {lds}")
        e(f"global_load_lds_dwordx4 v{voff}, s[{sb}:{sb+1}] nt")
    def wo_dma(i):
        e(f"s_add_u32 s49, s47, {i*1024}"); dma(10, 12, "s49"); sadd(12, 12, 8 * 1152)
    def w1_dma(i):
        e(f"s_add_u32 s49, s47, {i*1024}"); dma(11 + i % 3, 16, "s49")
        if i == 2: sadd(16, 16, 32 * 9216)
    def w2_dma(i):
        e(f"s_add_u32 s49, s48, {i*1024}"); dma(10, 18, "s49"); sadd(18, 18, 8 * 1152)
    def mlp_dma(i): (w1_dma(i) if i < 6 else w2_dma(i - 6))
    def red4(a, rors):
        e(f"v_permlane16_swap_b32 v{a}, v{a+1}"); e(f"v_permlane16_swap_b32 v{a+2}, v{a+3}")
        e(f"v_add_f32 v{a}, v{a}, v{a+1}"); e(f"v_add_f32 v{a+2}, v{a+2}, v{a+3}")
        e(f"v_permlane32_swap_b32 v{a}, v{a+2}"); e(f"v_add_f32 v{a}, v{a}, v{a+2}")
        for r in rors: e(f"v_add_f32_dpp v{a}, v{a}, v{a} row_ror:{r} {DPP}")
    def rows_allreduce(op, x, t):
        e(f"v_mov_b32 v{t}, v{x}"); e(f"v_permlane16_swap_b32 v{t}, v{x}"); e(f"{op} v{x}, v{x}, v{t}")
        e(f"v_mov_b32 v{t}, v{x}"); e(f"v_permlane32_swap_b32 v{t}, v{x}"); e(f"{op} v{x}, v{x}, v{t}")

    ts("start")
    if diag:
        for i in range(1, 16): e(f"s_mov_b32 s{64+2*i}, 0")
    e("s_cmp_ge_u32 s2, 256"); e("s_cbranch_scc1 L_exit")
    e("s_load_dwordx16 s[4:19], s[0:1], 0")
    e("s_load_dwordx2 s[20:21], s[0:1], 64")
    e("s_load_dwordx4 s[24:27], s[0:1], 72")
    e("v_lshrrev_b32 v1, 6, v0"); e("v_and_b32 v0, 63, v0"); e("v_readfirstlane_b32 s3, v1")
    e("s_and_b32 s22, s2, 15"); e("s_lshr_b32 s23, s2, 4")
    e("s_mov_b32 s38, 0xffffff00"); e("s_mov_b32 s39, 0xffff0000")
    e("v_lshrrev_b32 v1, 4, v0"); e("v_and_b32 v2, 15, v0"); e("v_and_b32 v3, 7, v0")
    e("s_cmp_eq_u32 s3, 0"); e("s_cbranch_scc0 L_comp0")
    e("s_setprio 3")
    e("v_lshlrev_b32 v8, 3, v0"); e("v_lshlrev_b32 v9, 1, v0")
    e("v_lshrrev_b32 v14, 3, v0"); e("v_lshlrev_b32 v15, 13, v14"); e("v_lshl_add_u32 v15, v3, 4, v15")
    e("s_lshr_b32 s46, s23, 2"); e(f"s_mul_i32 s47, s46, {144*8192}"); e("s_lshl_b32 s48, s22, 9"); e("s_add_u32 s47, s47, s48")
    e("s_and_b32 s48, s23, 3"); e("s_lshl_b32 s48, s48, 7"); e("s_add_u32 s47, s47, s48")
    e("s_waitcnt lgkmcnt(0)")
    e("global_load_dwordx2 v[20:21], v8, s[4:5]"); e("global_load_dwordx2 v[22:23], v8, s[4:5] offset:512"); e("global_load_ushort v28, v9, s[4:5] offset:1024")
    e("s_load_dword s28, s[26:27], 0")
    sadd(10, 10, "s47")
    WQ = 64
    for t in range(18):
        e(f"global_load_dwordx4 {v4(WQ+4*t)}, v15, s[10:11] nt")
        if t < 17: sadd(10, 10, 65536)
    e("s_barrier")
    ts("wq_iss")
    e("s_min_u32 s49, s2, 71"); e("s_lshl_b32 s49, s49, 4"); e("v_and_b32 v16, 1, v0"); e("v_lshl_add_u32 v16, v16, 2, v1"); e("v_lshl_add_u32 v16, v16, 1, s49")
    e("global_load_ushort v17, v16, s[4:5]")
    e("v_mov_b32 v40, 0"); e("v_mov_b32 v41, 0"); e("v_lshlrev_b32 v42, 3, v2"); e(f"ds_write_b64 v42, v[40:41] offset:{L_Z}")
    e("s_branch L_common")
    e("L_comp0:")
    e("s_lshl_b32 s46, s22, 24"); e("s_lshl_b32 s47, s23, 16"); e("s_add_u32 s46, s46, s47")
    e("s_lshl_b32 s47, s3, 13"); e("s_add_u32 s46, s46, s47"); e(f"s_add_u32 s46, s46, {61440*256 - 8192 + 4096}")
    e("v_lshlrev_b32 v8, 4, v0"); e("v_mov_b32 v16, 0")
    e("v_bfe_u32 v9, v0, 2, 2"); e("v_lshlrev_b32 v9, 8, v9"); e("v_lshl_add_u32 v9, v1, 6, v9"); e("v_and_b32 v14, 3, v0"); e("v_lshl_add_u32 v9, v14, 4, v9")
    e("s_waitcnt lgkmcnt(0)")
    e("s_load_dword s28, s[26:27], 0")
    sadd(6, 6, "s46"); sadd(8, 8, "s46")
    KR, VR = 64, 96
    e("s_barrier")
    for t in range(8): e(f"global_load_dwordx4 {v4(KR+4*t)}, v9, s[6:7] offset:{t*1024-4096} nt")
    for t in range(8): e(f"global_load_dwordx4 {v4(VR+4*t)}, v8, s[8:9] offset:{t*1024-4096} nt")
    e("L_common:")
    for r in range(4):
        e(f"v_mov_b32 v{4+r}, 0")
    e("v_and_b32 v14, 1, v0"); e("v_mov_b32 v18, 0xffff"); e("v_lshlrev_b32 v14, 4, v14"); e("v_lshlrev_b32 v18, v14, v18")
    for r in range(4):
        m = 0x0303030303030303 << (2 * r)
        e(f"s_mov_b32 exec_lo, {hex(m & 0xffffffff)}"); e(f"s_mov_b32 exec_hi, {hex(m & 0xffffffff)}"); e(f"v_mov_b32 v{4+r}, v18")
    e("s_mov_b64 exec, -1")
    e("v_lshrrev_b32 v14, 3, v0"); e("v_mul_u32_u24 v10, 1152, v14"); e("v_lshlrev_b32 v18, 1, v1"); e("v_xor_b32 v18, v18, v3"); e("v_lshl_add_u32 v10, v18, 4, v10")
    for i in range(3):
        e(f"v_add_u32 v14, {64*i}, v0"); e("v_mul_u32_u24 v18, 43691, v14"); e("v_lshrrev_b32 v18, 18, v18")
        e("v_mul_u32_u24 v19, 6, v18"); e("v_sub_u32 v14, v14, v19"); e(f"v_mul_u32_u24 v{11+i}, 9216, v18"); e(f"v_lshl_add_u32 v{11+i}, v14, 4, v{11+i}")
    e("s_lshl_b32 s46, s22, 3"); e("s_add_u32 s46, s46, s23"); e(f"s_mul_i32 s46, s46, {32*1152}"); e("s_lshl_b32 s47, s3, 7"); e("s_add_u32 s46, s46, s47")
    sadd(12, 12, "s46")
    e("s_and_b32 s31, s2, 7"); e("s_mul_i32 s31, s31, 12"); e("s_lshr_b32 s46, s2, 3"); e("s_add_u32 s31, s31, s46"); e("s_sub_u32 s31, s31, 16")
    e(f"s_mul_i32 s46, s31, {48*1152}"); e("s_add_u32 s46, s46, s47"); sadd(18, 18, "s46")
    e(f"s_mul_i32 s46, s3, {64*9216}"); e("s_mul_i32 s47, s31, 96"); e("s_add_u32 s46, s46, s47"); sadd(16, 16, "s46")
    e("s_mul_i32 s47, s3, 6144"); e(f"s_add_u32 s48, s47, {L_W2}"); e(f"s_add_u32 s47, s47, {L_W}")
    e("s_mov_b32 s32, 0x22222222"); e("s_mov_b32 s33, s32"); e("s_mov_b32 s34, 0x44444444"); e("s_mov_b32 s35, s34"); e("s_mov_b32 s36, 0x88888888"); e("s_mov_b32 s37, s36")
    e("s_cmp_eq_u32 s3, 0"); e("s_cbranch_scc0 L_comp1")
    e("s_waitcnt vmcnt(19)")
    ts("x")
    X, T = 30, 40
    for i, r in enumerate((20, 21, 22, 23)):
        e(f"v_lshlrev_b32 v{X+2*i}, 16, v{r}"); e(f"v_and_b32 v{X+2*i+1}, s39, v{r}")
    e(f"v_lshlrev_b32 v{X+8}, 16, v28")
    layernorm(X, T)
    for i in range(9): e(f"v_cvt_pk_bf16_f32 v{T+i}, v{X+i}, v{X+i}")
    e("v_lshlrev_b32 v14, 4, v0"); e("v_lshlrev_b32 v18, 2, v0")
    e(f"ds_write_b128 v14, {v4(T)} offset:{L_XN}"); e(f"ds_write_b128 v14, {v4(T+4)} offset:{L_XN+1024}"); e(f"ds_write_b32 v18, v{T+8} offset:{L_XN+2048}")
    e("s_lshr_b32 s46, s23, 2"); e(f"s_mul_i32 s46, s46, {144*4}"); e("v_lshrrev_b32 v14, 3, v0"); e("v_lshl_add_u32 v14, v14, 2, s46")
    for t in range(18): e(f"ds_read_b32 v{140+t}, v14 offset:{L_XN+32*t}")
    e("s_waitcnt lgkmcnt(0)")
    e("s_add_u32 s28, s28, 1")
    for t in range(18):
        A = 20 + 4 * (t % 2)
        for r in range(4): e(f"v_and_b32 v{A+r}, v{4+r}, v{140+t}")
        e(f"s_waitcnt vmcnt({18-t})")
        e(f"v_mfma_f32_16x16x32_bf16 v[32:35], {v4(A)}, {v4(WQ+4*t)}, {'0' if t == 0 else 'v[32:35]'}")
    e("v_add_u32 v14, 40, v0"); e("v_and_b32 v14, 63, v14"); e("v_lshlrev_b32 v14, 2, v14")
    e("s_lshl_b32 s46, s22, 13"); e(f"s_add_u32 s46, s46, {WS_A}"); sadd(40, 26, "s46")
    e("s_lshl_b32 s46, s23, 9"); e("v_lshlrev_b32 v18, 6, v3"); e("v_lshl_add_u32 v18, v1, 5, v18"); e("v_add_u32 v18, s46, v18")
    for r in range(4): e(f"ds_bpermute_b32 v{36+r}, v14, v{32+r}")
    e("v_mov_b32 v41, s28"); e("v_mov_b32 v43, s28"); e("v_mov_b32 v45, s28"); e("v_mov_b32 v47, s28")
    e("s_waitcnt lgkmcnt(0)")
    for r in range(4): e(f"v_add_f32 v{40+2*r}, v{32+r}, v{36+r}")
    e("s_mov_b64 exec, 0x00ff00ff")
    e("global_store_dwordx4 v18, v[40:43], s[40:41] sc1"); e("global_store_dwordx4 v18, v[44:47], s[40:41] offset:16 sc1")
    e("s_mov_b64 exec, -1")
    ts("qpub")
    e("v_lshlrev_b32 v8, 4, v0"); sadd(42, 40, 4096)
    poll("A", [f"global_load_dwordx4 {v4(64+4*i)}, v8, s[42:43] offset:{i*1024-4096} sc1" for i in range(8)],
         [64 + 2 * i + 1 for i in range(16)], 20, 32)
    ts("qgot")
    for h in range(2):
        for k in (0, 2):
            a = 64 + 4 * h + k
            e(f"v_add_f32 v{a}, v{a}, v{a+8}"); e(f"v_add_f32 v{a}, v{a}, v{a+16}"); e(f"v_add_f32 v{a}, v{a}, v{a+24}")
        e(f"v_cvt_pk_bf16_f32 v{20+h}, v{64+4*h}, v{66+4*h}")
    e("v_lshlrev_b32 v18, 2, v0")
    e(f"ds_write_b32 v18, v20 offset:{L_Q}"); e(f"ds_write_b32 v18, v21 offset:{L_Q+256}")
    e("s_waitcnt lgkmcnt(0)"); e("s_barrier")
    ts("B2")
    e("s_cmp_lt_u32 s2, 128"); e("s_cbranch_scc0 L_c_notwo")
    for i in range(N1_WO): wo_dma(i)
    e("s_branch L_c_w")
    e("L_c_notwo:"); e("s_cmp_lt_u32 s2, 224"); e("s_cbranch_scc0 L_c_w")
    for i in range(N1_MLP): mlp_dma(i)
    e("L_c_w:")
    e("s_lshl_b32 s46, s22, 14"); e("s_lshl_b32 s49, s23, 7"); e("s_add_u32 s46, s46, s49"); e(f"s_add_u32 s46, s46, {WS_B}"); sadd(40, 26, "s46")
    e("v_lshrrev_b32 v14, 5, v0"); e("v_lshrrev_b32 v18, 2, v2"); e("v_lshl_add_u32 v18, v14, 2, v18"); e("v_lshlrev_b32 v18, 11, v18")
    e("v_and_b32 v19, 3, v0"); e("v_lshl_add_u32 v18, v19, 5, v18"); e("v_and_b32 v19, 1, v1"); e("v_lshl_add_u32 v18, v19, 4, v18")
    e("s_lshl_b32 s46, s22, 9"); e("s_lshl_b32 s49, s23, 4"); e("s_add_u32 s46, s46, s49"); e(f"s_add_u32 s46, s46, {WS_BS}"); sadd(42, 26, "s46")
    e("v_lshlrev_b32 v19, 8, v14"); e("v_lshlrev_b32 v14, 5, v14"); e("v_mov_b32 v29, s28")
    e("s_barrier")
    e(f"ds_read_b128 v[20:23], v14 offset:{L_MAX}"); e(f"ds_read_b128 v[24:27], v14 offset:{L_MAX+16}")
    e("s_waitcnt lgkmcnt(0)")
    e("v_max3_f32 v20, v20, v21, v22"); e("v_max3_f32 v23, v23, v24, v25"); e("v_max3_f32 v20, v20, v26, v27"); e("v_max_f32 v20, v20, v23")
    e("v_bfi_b32 v56, s38, v20, v29"); e("v_mov_b32 v58, v29"); e("v_mov_b32 v59, v29")
    e("s_barrier")
    ts("B4")
    for w in range(8): e(f"ds_read_b128 {v4(64+4*w)}, v8 offset:{L_PV+1024*w}")
    e(f"ds_read_b128 v[20:23], v14 offset:{L_L}"); e(f"ds_read_b128 v[24:27], v14 offset:{L_L+16}")
    for st in (4, 8, 16):
        if st == 4: e("s_waitcnt lgkmcnt(2)" if not diag else "s_waitcnt lgkmcnt(0)")
        for w in range(0, 32, 2 * st):
            for k in (0, 2): e(f"v_pk_add_f32 {v2(64+w+k)}, {v2(64+w+k)}, {v2(64+w+st+k)}")
    for r in range(4): e(f"v_bfi_b32 v{64+r}, s38, v{64+r}, v29")
    e("global_store_dwordx4 v18, v[64:67], s[40:41] sc1")
    e("s_waitcnt lgkmcnt(0)")
    e("v_pk_add_f32 v[20:21], v[20:21], v[22:23]"); e("v_pk_add_f32 v[24:25], v[24:25], v[26:27]"); e("v_pk_add_f32 v[20:21], v[20:21], v[24:25]"); e("v_add_f32 v20, v20, v21")
    e("v_bfi_b32 v57, s38, v20, v29")
    e("s_mov_b32 exec_lo, 1"); e("s_mov_b32 exec_hi, 1")
    e("global_store_dwordx4 v19, v[56:59], s[42:43] sc1")
    e("s_mov_b64 exec, -1")
    ts("Bpub")
    e("s_branch L_roles")
    e("L_comp1:")
    def attention(n1, dmaf):
        for i in range(n1): dmaf(i)
        e("v_lshrrev_b32 v14, 3, v2"); e("v_lshlrev_b32 v18, 8, v14"); e("v_lshl_add_u32 v18, v1, 6, v18"); e("v_and_b32 v19, 3, v0"); e("v_lshl_add_u32 v18, v19, 4, v18")
        e("v_lshlrev_b32 v14, 5, v14"); e("s_lshl_b32 s46, s3, 2"); e("s_sub_u32 s46, s46, 4"); e("v_add_u32 v19, s46, v14")
        e("s_waitcnt lgkmcnt(0)"); e("s_add_u32 s28, s28, 1"); e("v_mov_b32 v29, s28")
        e("s_barrier")
        e(f"ds_read_b128 v[20:23], v18 offset:{L_Q}")
        e("s_waitcnt lgkmcnt(0)")
        D = 128
        for t in range(8):
            e(f"s_waitcnt vmcnt({8+n1+7-t})")
            e(f"v_mfma_f32_16x16x32_bf16 {v4(D+4*t)}, {v4(KR+4*t)}, v[20:23], 0")
        S = 32
        for t in range(8): e(f"v_cndmask_b32 v{S+t}, v{D+4*t}, v{D+4*t+1}, s[32:33]")
        for t in range(8): e(f"v_cndmask_b32 v{S+t}, v{S+t}, v{D+4*t+2}, s[34:35]")
        for t in range(8): e(f"v_cndmask_b32 v{S+t}, v{S+t}, v{D+4*t+3}, s[36:37]")
        for t in range(8): e(f"v_add_f32_dpp v{S+t}, v{S+t}, v{S+t} quad_perm:[1,0,3,2] {DPP}")
        for t in range(8): e(f"v_add_f32_dpp v{S+t}, v{S+t}, v{S+t} quad_perm:[2,3,0,1] {DPP}")
        for rnd in range(2):
            for t in range(0, 8, 2): e(f"v_cvt_pk_bf16_f32 v{40+t}, v{S+t}, v{S+t+1}")
            for t in range(0, 8, 2): e(f"v_lshlrev_b32 v{S+t}, 16, v{40+t}"); e(f"v_and_b32 v{S+t+1}, s39, v{40+t}")
            if rnd == 0:
                for t in range(8): e(f"v_mul_f32 v{S+t}, 0x3db504f3, v{S+t}")
        e(f"v_max3_f32 v40, v{S}, v{S+1}, v{S+2}"); e(f"v_max3_f32 v41, v{S+3}, v{S+4}, v{S+5}"); e(f"v_max3_f32 v40, v40, v{S+6}, v{S+7}"); e("v_max_f32 v40, v40, v41")
        rows_allreduce("v_max_f32", 40, 41)
        e("s_mov_b64 exec, 0x101"); e(f"ds_write_b32 v19, v40 offset:{L_MAX}"); e("s_mov_b64 exec, -1")
        e("s_waitcnt lgkmcnt(0)"); e("s_barrier")
        e(f"ds_read_b128 v[20:23], v14 offset:{L_MAX}"); e(f"ds_read_b128 v[24:27], v14 offset:{L_MAX+16}")
        e("s_waitcnt lgkmcnt(0)")
        e("v_max3_f32 v20, v20, v21, v22"); e("v_max3_f32 v23, v23, v24, v25"); e("v_max3_f32 v20, v20, v26, v27"); e("v_max_f32 v20, v20, v23")
        for t in range(8): e(f"v_sub_f32 v{S+t}, v{S+t}, v20")
        for t in range(8): e(f"v_mul_f32 v{S+t}, {LOG2E}, v{S+t}")
        for t in range(8): e(f"v_exp_f32 v{S+t}, v{S+t}")
        e(f"v_add_f32 v40, v{S}, v{S+1}")
        for t in range(2, 8): e(f"v_add_f32 v40, v40, v{S+t}")
        for t in range(8): e(f"v_cvt_pk_bf16_f32 v{S+t}, v{S+t}, v{S+t}")
        rows_allreduce("v_add_f32", 40, 41)
        for t in range(8):
            for r in range(4): e(f"v_and_b32 v{D+4*t+r}, v{4+r}, v{S+t}")
        e("s_mov_b64 exec, 0x101"); e(f"ds_write_b32 v19, v40 offset:{L_L}"); e("s_mov_b64 exec, -1")
        e("s_lshl_b32 s46, s3, 10"); e("v_add_u32 v18, s46, v8")
        for t in range(8):
            e(f"s_waitcnt vmcnt({n1+7-t})")
            e(f"v_mfma_f32_16x16x32_bf16 v[20:23], {v4(D+4*t)}, {v4(VR+4*t)}, {'0' if t == 0 else 'v[20:23]'}")
        e(f"ds_write_b128 v18, v[20:23] offset:{L_PV-1024}")
        e("s_waitcnt lgkmcnt(0)"); e("s_barrier")
    e("s_cmp_lt_u32 s2, 128"); e("s_cbranch_scc0 L_a_notwo")
    attention(N1_WO, wo_dma); e("s_branch L_wo")
    e("L_a_notwo:"); e("s_cmp_lt_u32 s2, 224"); e("s_cbranch_scc0 L_a_free")
    attention(N1_MLP, mlp_dma); e("s_branch L_mlp")
    e("L_a_free:")
    attention(0, None); e("s_branch L_end")
    e("L_roles:")
    e("s_cmp_lt_u32 s2, 128"); e("s_cbranch_scc1 L_wo")
    e("s_cmp_lt_u32 s2, 224"); e("s_cbranch_scc1 L_mlp")
    e("s_branch L_end")
    def tr_addr(base_s):
        e("v_lshrrev_b32 v14, 2, v2"); e("v_lshl_add_u32 v14, v1, 2, v14")
        e("v_bfe_u32 v18, v14, 1, 2"); e("v_lshlrev_b32 v18, 1, v18")
        e("v_lshlrev_b32 v14, 7, v14"); e("v_and_b32 v19, 1, v0"); e("v_lshl_add_u32 v14, v19, 3, v14"); e(f"v_add_u32 v14, {base_s}, v14")
        e("v_bfe_u32 v19, v0, 1, 1")
        for t in range(4):
            e(f"v_or_b32 v24, {2*t}, v19"); e("v_xor_b32 v24, v24, v18"); e(f"v_lshl_add_u32 v{20+t}, v24, 4, v14")
    def frag_addr(base):
        e("v_lshlrev_b32 v14, 4, v1"); e(f"v_add_u32 v14, {base}, v14"); e(f"v_mov_b32 v18, {L_Z}")
        e("s_mov_b32 s44, 0x11111111"); e("s_mov_b32 s45, s44")
        for t, m in enumerate(("s[44:45]", "s[32:33]", "s[34:35]", "s[36:37]")): e(f"v_cndmask_b32 v{24+t}, v18, v14, {m}")
    def pub_addr(nrec, wsoff, prod):
        e("v_lshrrev_b32 v14, 1, v1"); e("v_lshl_add_u32 v14, v2, 1, v14"); e("s_lshl_b32 s46, s3, 3"); e("v_add_u32 v14, s46, v14")
        e(f"v_mul_u32_u24 v28, {nrec*32}, v14"); e("v_and_b32 v14, 1, v1"); e("v_lshl_add_u32 v28, v14, 4, v28")
        e(f"s_lshl_b32 s46, {prod}, 5"); e(f"s_add_u32 s46, s46, {wsoff}"); sadd(40, 26, "s46")
    def publish(acc):
        for r in range(4): e(f"v_bfi_b32 v{acc+r}, s38, v{acc+r}, v29")
        e("s_mov_b32 exec_lo, 0x000f000f"); e("s_mov_b32 exec_hi, 0x000f000f")
        e(f"global_store_dwordx4 v28, {v4(acc)}, s[40:41] sc1"); e("s_mov_b64 exec, -1")
    e("L_wo:")
    for i in range(N1_WO, 4): wo_dma(i)
    tr_addr("s47"); frag_addr(L_XF); pub_addr(128, WS_C1, "s2")
    e("s_waitcnt vmcnt(0)")
    for t in range(4):
        e(f"ds_read_b64_tr_b16 {v2(64+4*t)}, v{20+t}"); e(f"ds_read_b64_tr_b16 {v2(66+4*t)}, v{20+t} offset:2048")
    e("s_cmp_eq_u32 s3, 0"); e("s_cbranch_scc0 L_wo_b5")
    e("s_lshl_b32 s46, s22, 3"); e("s_add_u32 s46, s46, s23"); e("s_lshl_b32 s46, s46, 11"); e(f"s_add_u32 s46, s46, {WS_B}"); sadd(42, 26, "s46")
    e("s_lshl_b32 s46, s22, 9"); e("s_lshr_b32 s49, s23, 2"); e("s_lshl_b32 s49, s49, 8"); e("s_add_u32 s46, s46, s49"); e(f"s_add_u32 s46, s46, {WS_BS}"); sadd(44, 26, "s46")
    e("v_lshrrev_b32 v14, 3, v0"); e("v_lshlrev_b32 v14, 4, v14")
    e("v_and_b32 v18, 3, v0"); e("v_lshlrev_b32 v18, 4, v18"); e("v_bfe_u32 v19, v0, 2, 1"); e("v_lshl_add_u32 v18, v19, 3, v18"); e("v_lshl_add_u32 v18, v1, 1, v18")
    poll("B", ["global_load_dwordx4 v[96:99], v8, s[42:43] sc1", "global_load_dwordx4 v[100:103], v8, s[42:43] offset:1024 sc1",
               "global_load_dwordx4 v[104:107], v14, s[44:45] sc1", "global_load_dwordx4 v[108:111], v14, s[44:45] offset:128 sc1"],
         list(range(96, 112)), 40, 8)
    ts("Bgot")
    e("v_and_b32 v104, s38, v104"); e("v_and_b32 v108, s38, v108"); e("v_max_f32 v40, v104, v108")
    e(f"v_max_f32_dpp v40, v40, v40 row_ror:8 {DPP}")
    for r in list(range(96, 104)) + [105, 109]: e(f"v_and_b32 v{r}, s38, v{r}")
    rows_allreduce("v_max_f32", 40, 41)
    e("v_sub_f32 v104, v104, v40"); e("v_sub_f32 v108, v108, v40"); e(f"v_mul_f32 v104, {LOG2E}, v104"); e(f"v_mul_f32 v108, {LOG2E}, v108")
    e("v_exp_f32 v104, v104"); e("v_exp_f32 v108, v108")
    e("v_mul_f32 v40, v104, v105"); e("v_fmac_f32 v40, v108, v109")
    for r in range(4): e(f"v_mul_f32 v{96+r}, v104, v{96+r}")
    e(f"v_add_f32_dpp v40, v40, v40 row_ror:8 {DPP}")
    for r in range(4): e(f"v_fmac_f32 v{96+r}, v108, v{100+r}")
    rows_allreduce("v_add_f32", 40, 41)
    e("v_rcp_f32 v40, v40")
    red4(96, (8,))
    e("v_mul_f32 v96, v96, v40"); e("v_cvt_pk_bf16_f32 v96, v96, v96")
    e(f"ds_write_b16 v18, v96 offset:{L_XF}")
    e("L_wo_b5:")
    e("s_waitcnt lgkmcnt(0)"); e("s_barrier")
    ts("B5")
    for t in range(4): e(f"ds_read_b128 {v4(80+4*t)}, v{24+t}")
    for t in range(4):
        e(f"s_waitcnt lgkmcnt({3-t})" if not diag else "s_waitcnt lgkmcnt(0)")
        e(f"v_mfma_f32_16x16x32_bf16 v[32:35], {v4(64+4*t)}, {v4(80+4*t)}, {'0' if t == 0 else 'v[32:35]'}")
    publish(32)
    ts("C1pub")
    e("s_cmp_eq_u32 s3, 0"); e("s_cbranch_scc0 L_end")
    e("s_cmp_lt_u32 s2, 72"); e("s_cbranch_scc0 L_end")
    e("s_lshl_b32 s46, s2, 12"); e(f"s_add_u32 s46, s46, {WS_C1}"); sadd(42, 26, "s46")
    e("s_lshl_b32 s46, s2, 5"); e(f"s_add_u32 s46, s46, {WS_C2}"); sadd(44, 26, "s46")
    e("v_lshrrev_b32 v14, 1, v2"); e("v_lshlrev_b32 v14, 12, v14"); e("v_and_b32 v18, 1, v0"); e("v_lshl_add_u32 v14, v18, 4, v14"); e("v_lshl_add_u32 v14, v1, 2, v14")
    e("v_lshlrev_b32 v17, 16, v17")
    def gather_sum(name, n):
        poll(name, [f"global_load_dwordx4 {v4(96+4*i)}, v8, s[42:43] offset:{1024*i} sc1" for i in range(n)], list(range(96, 96 + 4 * n)), 40, 8)
        if name == "C1": ts("C1got")
        for r in range(4 * n): e(f"v_and_b32 v{96+r}, s38, v{96+r}")
        if n == 4:
            for k in (0, 2): e(f"v_pk_add_f32 {v2(104+k)}, {v2(104+k)}, {v2(108+k)}")
        for i in (1, 2):
            for k in (0, 2): e(f"v_pk_add_f32 {v2(96+k)}, {v2(96+k)}, {v2(96+4*i+k)}")
        red4(96, (8, 4, 2))
        rbf(96, 96)
        e("v_add_f32 v17, v17, v96"); e("v_cvt_pk_bf16_f32 v17, v17, v17")
    gather_sum("C1", 4)
    e("v_bfi_b32 v18, s39, v17, v29")
    e("global_store_dword v14, v18, s[44:45] sc1")
    ts("C2pub")
    e("v_and_b32 v17, s39, v17")
    e(f"s_mul_i32 s46, s2, {96*32}"); e(f"s_add_u32 s46, s46, {WS_D}"); sadd(42, 26, "s46")
    gather_sum("D", 3)
    e("s_mov_b32 exec_lo, 0x00030003"); e("s_mov_b32 exec_hi, 0x00030003")
    e("global_store_short v16, v17, s[20:21]")
    e("s_cmp_eq_u32 s2, 0"); e("s_cbranch_scc0 L_end")
    e("s_mov_b64 exec, 1"); e("v_mov_b32 v14, 0"); e("global_store_dword v14, v29, s[26:27] sc1")
    e("s_branch L_end")
    e("L_mlp:")
    for i in range(N1_MLP, 12): mlp_dma(i)
    tr_addr("s48")
    e("s_lshl_b32 s49, s3, 7"); e(f"s_add_u32 s49, s49, {L_H1}")
    frag_addr("s49"); pub_addr(96, WS_D, "s31")
    e("v_lshrrev_b32 v14, 2, v2"); e("v_lshl_add_u32 v14, v1, 2, v14"); e("v_mul_u32_u24 v30, 96, v14"); e("v_and_b32 v14, 3, v0"); e("v_lshl_add_u32 v30, v14, 3, v30"); e("v_add_u32 v30, s47, v30")
    e("s_lshl_b32 s46, s3, 7"); e("v_lshlrev_b32 v31, 4, v1"); e("v_add_u32 v31, s46, v31")
    e("s_mul_i32 s46, s3, 192"); e("v_lshlrev_b32 v32, 4, v1"); e("v_add_u32 v32, s46, v32")
    e("v_min_u32 v33, 47, v0"); e("v_lshlrev_b32 v33, 2, v33")
    e("v_bfe_u32 v14, v0, 2, 2"); e("v_lshlrev_b32 v34, 4, v14"); e("v_bfe_u32 v14, v0, 4, 1"); e("v_lshl_add_u32 v34, v14, 3, v34"); e("v_and_b32 v14, 3, v0"); e("v_lshl_add_u32 v34, v14, 1, v34")
    e("v_lshrrev_b32 v14, 5, v0"); e("v_lshl_add_u32 v34, v14, 6, v34"); e("v_add_u32 v34, s49, v34")
    W1F, W2F = 64, 96
    for t in range(4): e(f"v_mov_b32 v{W2F+8*t+6}, 0"); e(f"v_mov_b32 v{W2F+8*t+7}, 0")
    e("s_waitcnt vmcnt(6)")
    for ks in range(2):
        for t in range(3):
            r = W1F + 4 * (3 * ks + t); o = ks * 32 * 96 + 32 * t
            e(f"ds_read_b64_tr_b16 {v2(r)}, v30 offset:{o}"); e(f"ds_read_b64_tr_b16 {v2(r+2)}, v30 offset:{o+16*96}")
    e("s_waitcnt vmcnt(0)")
    for t in range(4):
        for k in range(3): e(f"ds_read_b64_tr_b16 {v2(W2F+8*t+2*k)}, v{20+t} offset:{2048*k}")
    e("s_cmp_eq_u32 s3, 0"); e("s_cbranch_scc0 L_mlp_b5")
    e("s_and_b32 s46, s2, 7"); e("s_lshl_b32 s46, s46, 12"); e(f"s_add_u32 s46, s46, {WS_C2}"); sadd(42, 26, "s46")
    e("v_lshlrev_b32 v9, 2, v0")
    e("v_lshrrev_b32 v14, 3, v0"); e("v_lshlrev_b32 v18, 6, v14"); e("v_and_b32 v14, 3, v0"); e("v_lshl_add_u32 v18, v14, 4, v18"); e("v_bfe_u32 v14, v0, 2, 1"); e("v_lshl_add_u32 v18, v14, 3, v18")
    e("v_subrev_u32 v19, s49, v34")
    X, T = 128, 140
    poll("C2", [f"global_load_dwordx4 {v4(X)}, v8, s[42:43] sc1", f"global_load_dwordx4 {v4(X+4)}, v8, s[42:43] offset:1024 sc1", f"global_load_dword v{X+8}, v9, s[42:43] offset:2048 sc1"],
         list(range(X, X + 9)), 40, 16)
    ts("C2got")
    for i in range(9): e(f"v_and_b32 v{X+i}, s39, v{X+i}")
    layernorm(X, T)
    for i in range(4): e(f"v_cvt_pk_bf16_f32 v{T+i}, v{X+2*i}, v{X+2*i+1}")
    e(f"v_cvt_pk_bf16_f32 v{T+4}, v{X+8}, v{X+8}")
    e(f"ds_write_b64 v18, {v2(T)} offset:{L_HN}"); e(f"ds_write_b64 v18, {v2(T+2)} offset:{L_HN+512}"); e(f"ds_write_b16 v19, v{T+4} offset:{L_HN+1024}")
    e("L_mlp_b5:")
    e("s_waitcnt lgkmcnt(0)"); e("s_barrier")
    ts("B5")
    e(f"ds_read_b128 v[36:39], v31 offset:{L_HN}"); e(f"ds_read_b128 v[40:43], v31 offset:{L_HN+64}")
    e("s_waitcnt lgkmcnt(0)")
    for ks in range(2):
        for t in range(3): e(f"v_mfma_f32_16x16x32_bf16 {v4(44+4*t)}, {v4(W1F+4*(3*ks+t))}, {v4(36+4*ks)}, {'0' if ks == 0 else v4(44+4*t)}")
    e("s_mov_b32 exec_lo, 0x00010001"); e("s_mov_b32 exec_hi, 0x00010001")
    for t in range(3): e(f"ds_write_b128 v32, {v4(44+4*t)} offset:{L_Y+64*t}")
    e("s_mov_b64 exec, -1")
    e("s_waitcnt lgkmcnt(0)"); e("s_barrier")
    for w in range(9): e(f"ds_read_b32 v{44+w}, v33 offset:{L_Y+192*w}")
    e("s_waitcnt lgkmcnt(0)")
    for a, b in ((44, 45), (46, 47), (48, 49), (50, 51), (44, 46), (48, 50), (44, 52), (44, 48)): e(f"v_add_f32 v{a}, v{a}, v{b}")
    e("v_max_f32 v44, 0, v44"); e("v_cvt_pk_bf16_f32 v44, v44, v44")
    e("s_mov_b32 s44, 0"); e("s_mov_b32 s45, 0xffff0000"); e("v_cndmask_b32 v44, v44, 0, s[44:45]")
    e("ds_write_b16 v34, v44")
    for t in range(4): e(f"ds_read_b128 {v4(128+8*t)}, v{24+t}"); e(f"ds_read_b128 {v4(132+8*t)}, v{24+t} offset:64")
    e("s_waitcnt lgkmcnt(0)")
    for t in range(4):
        for k in range(2): e(f"v_mfma_f32_16x16x32_bf16 v[36:39], {v4(W2F+8*t+4*k)}, {v4(128+8*t+4*k)}, {'0' if t + k == 0 else 'v[36:39]'}")
    publish(36)
    ts("Dpub")
    e("L_end:")
    if diag:
        e("s_mov_b64 exec, -1")
        ts("end"); e("s_waitcnt lgkmcnt(0)")
        for i in range(16): e(f"v_writelane_b32 v1, s{64+2*i}, {i}")
        e("s_mul_i32 s46, s2, 9"); e("s_add_u32 s46, s46, s3"); e("s_lshl_b32 s46, s46, 6"); e(f"s_add_u32 s46, s46, {512<<20}"); sadd(40, 26, "s46")
        e("v_lshlrev_b32 v2, 2, v0"); e("s_mov_b64 exec, 0xffff"); e("global_store_dword v2, v1, s[40:41]")
        if dbgts is not None:
            e(f"s_cmp_eq_u32 s2, {dbgts}"); e("s_cbranch_scc0 L_exit"); e("s_cmp_eq_u32 s3, 0"); e("s_cbranch_scc0 L_exit")
            e("global_store_dword v2, v1, s[24:25]")
    e("L_exit:")
    e("s_endpgm")
    body = "\n".join(pad(L))
    hdr = open("cdna_kernels/" + KN[:-7] + ".s.ref").read().split("; Override launch")[0]
    hdr += f"; @launch grid=(256,1,1) block=(576,1,1) lds={LDS}\n"
    if diag: hdr += "; @ts " + " ".join(TS) + "\n"
    return hdr + f""".amdgcn_target "amdgcn-amd-amdhsa--gfx950"
.text
.globl {KN}
.p2align 8
.type {KN},@function
{KN}:
{body}
.section .rodata,"a"
.p2align 6
.amdhsa_kernel {KN}
  .amdhsa_next_free_vgpr 168
  .amdhsa_next_free_sgpr 102
  .amdhsa_accum_offset 168
  .amdhsa_group_segment_fixed_size 0
  .amdhsa_kernarg_size 88
  .amdhsa_user_sgpr_count 2
  .amdhsa_user_sgpr_kernarg_segment_ptr 1
  .amdhsa_system_sgpr_workgroup_id_x 1
.end_amdhsa_kernel
"""
if __name__ == "__main__":
    open("k_diag.s", "w").write(gen(diag=True))
    open("k_dbg.s", "w").write(gen(diag=True, dbgts=0))
    open("cdna_kernels/" + KN[:-7] + ".s", "w").write(gen())
```

```python
import sys
from asmlib import pad
KN = "sequential_preLN__sliding_block_cached__dense_activation_relu__decode_kernel"
WS_A, WS_B, WS_BS, WS_C1, WS_C2, WS_D = 0x1000, 0x40000, 0x90000, 0x100000, 0x180000, 0x200000
L_XN, L_Q, L_MAX, L_L, L_Z, L_XF, L_HN, L_Y, L_H1, L_PV, L_W = 0, 2560, 3072, 3136, 3328, 3456, 4096, 6144, 8192, 12288, 20480
L_W2 = L_W + 9 * 6144
LDS = L_W2 + 9 * 6144
SPIN = 30000
FAST = 0x300000
LOG2E = "0x3fb8aa3b"
DPP = "row_mask:0xf bank_mask:0xf"
TS = ["start", "wq_iss", "x", "qpub", "qgot", "B2", "B4", "Bpub", "Bgot", "B5", "C1pub", "C1got", "Wgot", "C2got", "Dpub", "end"]

def gen(diag=False, N1_WO=4, N1_MLP=0, dbgts=None, D=3, P=11, PF=1, FA=1, FB=1, MT=0):
    L = []; e = L.append
    def ts(name):
        if diag: i = TS.index(name); e(f"s_memrealtime s[{64+2*i}:{65+2*i}]")
    def sadd(d, a, off):
        e(f"s_add_u32 s{d}, s{a}, {off}"); e(f"s_addc_u32 s{d+1}, s{a+1}, 0")
    def v4(r): return f"v[{r}:{r+3}]"
    def v2(r): return f"v[{r}:{r+1}]"
    def wave_sum2(a, b, sa, sb):
        for r in (8, 4, 2, 1):
            for x in (a, b):
                if x is not None: e(f"v_add_f32_dpp v{x}, v{x}, v{x} row_ror:{r} {DPP}")
        for x in (a, b):
            if x is not None: e(f"v_add_f32_dpp v{x}, v{x}, v{x} row_bcast:15 row_mask:0xa bank_mask:0xf")
        for x in (a, b):
            if x is not None: e(f"v_add_f32_dpp v{x}, v{x}, v{x} row_bcast:31 row_mask:0xc bank_mask:0xf")
        e(f"v_readlane_b32 s{sa}, v{a}, 63")
        if b is not None: e(f"v_readlane_b32 s{sb}, v{b}, 63")
    def rbf(d, s):
        e(f"v_cvt_pk_bf16_f32 v{d}, v{s}, v{s}"); e(f"v_and_b32 v{d}, s39, v{d}")
    def layernorm(X, T):
        e(f"v_add_f32 v{T}, v{X}, v{X+1}")
        for i in range(2, 9): e(f"v_add_f32 v{T}, v{T}, v{X+i}")
        wave_sum2(T, None, 46, None)
        e(f"v_mov_b32 v{T+1}, 0x3ae38e39")
        e(f"v_mul_f32 v{T+1}, s46, v{T+1}")
        for i in range(9): e(f"v_sub_f32 v{T+2+i}, v{X+i}, v{T+1}")
        e(f"v_mul_f32 v{T}, v{T+2}, v{T+2}")
        for i in range(1, 9): e(f"v_fmac_f32 v{T}, v{T+2+i}, v{T+2+i}")
        rbf(T + 1, T + 1)
        wave_sum2(T, None, 46, None)
        for i in range(9): e(f"v_sub_f32 v{X+i}, v{X+i}, v{T+1}")
        e(f"v_mov_b32 v{T}, 0x3ae38e39"); e(f"v_mul_f32 v{T}, s46, v{T}")
        rbf(T, T)
        e(f"v_add_f32 v{T}, 0x3727c5ac, v{T}")
        rbf(T, T)
        e(f"v_sqrt_f32 v{T}, v{T}")
        for i in range(0, 8, 2):
            e(f"v_cvt_pk_bf16_f32 v{T+2}, v{X+i}, v{X+i+1}"); e(f"v_lshlrev_b32 v{X+i}, 16, v{T+2}"); e(f"v_and_b32 v{X+i+1}, s39, v{T+2}")
        rbf(X + 8, X + 8)
        rbf(T, T)
        e(f"v_rcp_f32 v{T+1}, v{T}")
        for i in range(9): e(f"v_mul_f32 v{T+2+i}, v{X+i}, v{T+1}")
        for i in range(9): e(f"v_fma_f32 v{X+i}, -v{T+2+i}, v{T}, v{X+i}")
        for i in range(9): e(f"v_fma_f32 v{X+i}, v{X+i}, v{T+1}, v{T+2+i}")
    def poll(name, loads, check, vt, cmp, dual=None):
        e("s_mov_b32 s30, 0")
        if dual:
            for i, b in enumerate(dual[0]): e(f"s_mov_b64 s[{52+2*i}:{53+2*i}], s[{b}:{b+1}]")
        e(f"L_poll_{name}:")
        if dual:
            e("s_and_b32 s31, s30, 31"); e("s_cmp_eq_u32 s31, 31"); e(f"s_cselect_b32 s31, 0, {FAST}")
            for i, b in enumerate(dual[0]): sadd(b, 52 + 2 * i, "s31")
            e("s_cmp_eq_u32 s30, 24"); e(f"s_cbranch_scc0 L_nsp_{name}"); dual[1](); e(f"L_nsp_{name}:")
        for l in loads: e(l)
        e("s_add_u32 s30, s30, 1"); e(f"s_cmp_gt_u32 s30, {SPIN}"); e("s_cbranch_scc1 L_end")
        e("s_waitcnt vmcnt(0)")
        acc = vt; first = True; c = list(check)
        while c:
            if first: e(f"v_bitop3_b32 v{acc}, v{c[0]}, v{c[1]}, s28 bitop3:0x7e"); c = c[2:]; first = False
            else: e(f"v_bitop3_b32 v{acc}, v{c[0]}, s28, v{acc} bitop3:0xbe"); c = c[1:]
        if cmp == 32: e(f"v_cmp_ne_u32 vcc, 0, v{acc}")
        elif cmp == 16: e(f"v_cmp_ne_u16 vcc, 0, v{acc}")
        else: e(f"v_and_b32 v{acc}, 0xff, v{acc}"); e(f"v_cmp_ne_u32 vcc, 0, v{acc}")
        e(f"s_cbranch_vccnz L_poll_{name}")
    def late_slow(name, f):
        e("s_cmp_le_u32 s30, 24"); e(f"s_cbranch_scc0 L_nsq_{name}"); f(); e(f"L_nsq_{name}:")
    def dma(voff, sb, lds):
        e(f"s_mov_b32 m0, {lds}" if isinstance(lds, int) else f"s_mov_b32 m0, {lds}")
        e(f"global_load_lds_dwordx4 v{voff}, s[{sb}:{sb+1}] nt")
    def wo_dma(i):
        e(f"s_add_u32 s49, s47, {i*1024}"); dma(10, 12, "s49"); sadd(12, 12, 8 * 1152)
    def w1_dma(i):
        e(f"s_add_u32 s49, s47, {i*1024}"); dma(11 + i % 3, 16, "s49")
        if i == 2: sadd(16, 16, 32 * 9216)
    def w2_dma(i):
        e(f"s_add_u32 s49, s48, {i*1024}"); dma(10, 18, "s49"); sadd(18, 18, 8 * 1152)
    def mlp_dma(i): (w1_dma(i) if i < 6 else w2_dma(i - 6))
    def red4(a, rors):
        e(f"v_permlane16_swap_b32 v{a}, v{a+1}"); e(f"v_permlane16_swap_b32 v{a+2}, v{a+3}")
        e(f"v_add_f32 v{a}, v{a}, v{a+1}"); e(f"v_add_f32 v{a+2}, v{a+2}, v{a+3}")
        e(f"v_permlane32_swap_b32 v{a}, v{a+2}"); e(f"v_add_f32 v{a}, v{a}, v{a+2}")
        for r in rors: e(f"v_add_f32_dpp v{a}, v{a}, v{a} row_ror:{r} {DPP}")
    def rows_allreduce(op, x, t):
        e(f"v_mov_b32 v{t}, v{x}"); e(f"v_permlane16_swap_b32 v{t}, v{x}"); e(f"{op} v{x}, v{x}, v{t}")
        e(f"v_mov_b32 v{t}, v{x}"); e(f"v_permlane32_swap_b32 v{t}, v{x}"); e(f"{op} v{x}, v{x}, v{t}")

    ts("start")
    if diag:
        for i in range(1, 16): e(f"s_mov_b32 s{64+2*i}, 0")
    e("s_cmp_ge_u32 s2, 256"); e("s_cbranch_scc1 L_exit")
    e("s_load_dwordx16 s[4:19], s[0:1], 0")
    e("s_load_dwordx2 s[20:21], s[0:1], 64")
    e("s_load_dwordx4 s[24:27], s[0:1], 72")
    e("v_lshrrev_b32 v1, 6, v0"); e("v_and_b32 v0, 63, v0"); e("v_readfirstlane_b32 s3, v1")
    e("s_and_b32 s22, s2, 15"); e("s_lshr_b32 s23, s2, 4")
    e("s_mov_b32 s38, 0xffffff00"); e("s_mov_b32 s39, 0xffff0000")
    e("v_lshrrev_b32 v1, 4, v0"); e("v_and_b32 v2, 15, v0"); e("v_and_b32 v3, 7, v0")
    e("s_cmp_eq_u32 s3, 0"); e("s_cbranch_scc0 L_comp0")
    e("s_setprio 3")
    e("v_lshlrev_b32 v8, 3, v0"); e("v_lshlrev_b32 v9, 1, v0")
    e("v_lshrrev_b32 v14, 3, v0"); e("v_lshlrev_b32 v15, 13, v14"); e("v_lshl_add_u32 v15, v3, 4, v15")
    e("s_lshr_b32 s46, s23, 2"); e(f"s_mul_i32 s47, s46, {144*8192}"); e("s_lshl_b32 s48, s22, 9"); e("s_add_u32 s47, s47, s48")
    e("s_and_b32 s48, s23, 3"); e("s_lshl_b32 s48, s48, 7"); e("s_add_u32 s47, s47, s48")
    e("s_waitcnt lgkmcnt(0)")
    e("global_load_dwordx2 v[20:21], v8, s[4:5]"); e("global_load_dwordx2 v[22:23], v8, s[4:5] offset:512"); e("global_load_ushort v28, v9, s[4:5] offset:1024")
    e("s_load_dword s28, s[26:27], 0")
    sadd(10, 10, "s47")
    WQ = 64
    for t in range(18):
        e(f"global_load_dwordx4 {v4(WQ+4*t)}, v15, s[10:11] nt")
        if t < 17: sadd(10, 10, 65536)
    e("s_barrier")
    e("s_min_u32 s49, s2, 71"); e("s_lshl_b32 s49, s49, 4"); e("v_and_b32 v16, 1, v0"); e("v_lshl_add_u32 v16, v16, 2, v1"); e("v_lshl_add_u32 v16, v16, 1, s49")
    e("global_load_ushort v17, v16, s[4:5]")
    e("v_mov_b32 v40, 0"); e("v_mov_b32 v41, 0"); e("v_lshlrev_b32 v42, 3, v2"); e(f"ds_write_b64 v42, v[40:41] offset:{L_Z}")
    e("s_branch L_common")
    e("L_comp0:")
    e("s_lshl_b32 s46, s22, 24"); e("s_lshl_b32 s47, s23, 16"); e("s_add_u32 s46, s46, s47")
    e("s_lshl_b32 s47, s3, 13"); e("s_add_u32 s46, s46, s47"); e(f"s_add_u32 s46, s46, {61440*256 - 8192 + 4096}")
    e("v_lshlrev_b32 v8, 4, v0"); e("v_mov_b32 v16, 0")
    e("v_bfe_u32 v9, v0, 2, 2"); e("v_lshlrev_b32 v9, 8, v9"); e("v_lshl_add_u32 v9, v1, 6, v9"); e("v_and_b32 v14, 3, v0"); e("v_lshl_add_u32 v9, v14, 4, v9")
    e("s_waitcnt lgkmcnt(0)")
    e("s_load_dword s28, s[26:27], 0")
    sadd(6, 6, "s46"); sadd(8, 8, "s46")
    KR, VR = 64, 96
    if PF:
        e("s_cmp_eq_u32 s3, 8"); e("s_cbranch_scc0 L_nopf")
        e("s_getpc_b64 s[50:51]")
        e("L_pc:")
        e("v_lshlrev_b32 v14, 7, v0"); e("v_add_u32 v18, 8192, v14"); e("v_min_u32 v18, L_exit-L_pc, v18")
        e("global_load_dword v30, v14, s[50:51]"); e("global_load_dword v31, v18, s[50:51]")
        e("L_nopf:")
    e("s_barrier")
    def kv(i):
        if i < 8: e(f"global_load_dwordx4 {v4(KR+4*i)}, v9, s[6:7] offset:{i*1024-4096} nt")
        else: e(f"global_load_dwordx4 {v4(VR+4*(i-8))}, v8, s[8:9] offset:{(i-8)*1024-4096} nt")
    for i in range(D): kv(i)
    e("L_common:")
    for r in range(4):
        e(f"v_mov_b32 v{4+r}, 0")
    e("v_and_b32 v14, 1, v0"); e("v_mov_b32 v18, 0xffff"); e("v_lshlrev_b32 v14, 4, v14"); e("v_lshlrev_b32 v18, v14, v18")
    for r in range(4):
        m = 0x0303030303030303 << (2 * r)
        e(f"s_mov_b32 exec_lo, {hex(m & 0xffffffff)}"); e(f"s_mov_b32 exec_hi, {hex(m & 0xffffffff)}"); e(f"v_mov_b32 v{4+r}, v18")
    e("s_mov_b64 exec, -1")
    e("v_lshrrev_b32 v14, 3, v0"); e("v_mul_u32_u24 v10, 1152, v14"); e("v_lshlrev_b32 v18, 1, v1"); e("v_xor_b32 v18, v18, v3"); e("v_lshl_add_u32 v10, v18, 4, v10")
    for i in range(3):
        e(f"v_add_u32 v14, {64*i}, v0"); e("v_mul_u32_u24 v18, 43691, v14"); e("v_lshrrev_b32 v18, 18, v18")
        e("v_mul_u32_u24 v19, 6, v18"); e("v_sub_u32 v14, v14, v19"); e(f"v_mul_u32_u24 v{11+i}, 9216, v18"); e(f"v_lshl_add_u32 v{11+i}, v14, 4, v{11+i}")
    e("s_lshl_b32 s46, s22, 3"); e("s_add_u32 s46, s46, s23"); e(f"s_mul_i32 s46, s46, {32*1152}"); e("s_lshl_b32 s47, s3, 7"); e("s_add_u32 s46, s46, s47")
    sadd(12, 12, "s46")
    e("s_and_b32 s29, s2, 7"); e("s_mul_i32 s29, s29, 12"); e("s_lshr_b32 s46, s2, 3"); e("s_add_u32 s29, s29, s46"); e("s_sub_u32 s29, s29, 16")
    e(f"s_mul_i32 s46, s29, {48*1152}"); e("s_add_u32 s46, s46, s47"); sadd(18, 18, "s46")
    e(f"s_mul_i32 s46, s3, {64*9216}"); e("s_mul_i32 s47, s29, 96"); e("s_add_u32 s46, s46, s47"); sadd(16, 16, "s46")
    e("s_mul_i32 s47, s3, 6144"); e(f"s_add_u32 s48, s47, {L_W2}"); e(f"s_add_u32 s47, s47, {L_W}")
    e("s_mov_b32 s32, 0x22222222"); e("s_mov_b32 s33, s32"); e("s_mov_b32 s34, 0x44444444"); e("s_mov_b32 s35, s34"); e("s_mov_b32 s36, 0x88888888"); e("s_mov_b32 s37, s36")
    e("s_cmp_eq_u32 s3, 0"); e("s_cbranch_scc0 L_comp1")
    e("s_lshl_b32 s46, s22, 13"); e(f"s_add_u32 s46, s46, {WS_A}"); sadd(40, 26, "s46")
    e("s_lshl_b32 s46, s23, 9"); e("v_lshlrev_b32 v160, 6, v3"); e("v_lshl_add_u32 v160, v1, 5, v160"); e("v_add_u32 v160, s46, v160")
    e("s_lshl_b32 s46, s22, 14"); e("s_lshl_b32 s49, s23, 7"); e("s_add_u32 s46, s46, s49"); e(f"s_add_u32 s46, s46, {WS_B}"); sadd(56, 26, "s46")
    e("v_lshrrev_b32 v14, 5, v0"); e("v_lshrrev_b32 v161, 2, v2"); e("v_lshl_add_u32 v161, v14, 2, v161"); e("v_lshlrev_b32 v161, 11, v161")
    e("v_and_b32 v19, 3, v0"); e("v_lshl_add_u32 v161, v19, 5, v161"); e("v_and_b32 v19, 1, v1"); e("v_lshl_add_u32 v161, v19, 4, v161")
    e("s_lshl_b32 s46, s22, 9"); e("s_lshl_b32 s49, s23, 4"); e("s_add_u32 s46, s46, s49"); e(f"s_add_u32 s46, s46, {WS_BS}"); sadd(58, 26, "s46")
    e("v_lshlrev_b32 v162, 8, v14")
    sadd(60, 40, FAST); sadd(62, 56, FAST); sadd(14, 58, FAST)
    def pubA(sb, r, fl):
        e("s_mov_b64 exec, 0x00ff00ff")
        e(f"global_store_dwordx4 v160, {v4(r)}, s[{sb}:{sb+1}] {fl}"); e(f"global_store_dwordx4 v160, {v4(r+4 if r != 52 else r)}, s[{sb}:{sb+1}] offset:16 {fl}")
        e("s_mov_b64 exec, -1")
    def pubB(sb, r, fl): e(f"global_store_dwordx4 v161, {v4(r)}, s[{sb}:{sb+1}] {fl}")
    def pubBS(sb, r, fl):
        e("s_mov_b32 exec_lo, 1"); e("s_mov_b32 exec_hi, 1"); e(f"global_store_dwordx4 v162, {v4(r)}, s[{sb}:{sb+1}] {fl}"); e("s_mov_b64 exec, -1")
    NPW = 2 * FA + 2 * FB
    e("s_waitcnt lgkmcnt(0)")
    for r in range(4): e(f"v_mov_b32 v{52+r}, s28")
    if FA: pubA(60, 52, "")
    if FB: pubB(62, 52, ""); pubBS(14, 52, "")
    e(f"s_waitcnt vmcnt({19+NPW})")
    ts("x")
    X, T = 30, 40
    for i, r in enumerate((20, 21, 22, 23)):
        e(f"v_lshlrev_b32 v{X+2*i}, 16, v{r}"); e(f"v_and_b32 v{X+2*i+1}, s39, v{r}")
    e(f"v_lshlrev_b32 v{X+8}, 16, v28")
    layernorm(X, T)
    for i in range(9): e(f"v_cvt_pk_bf16_f32 v{T+i}, v{X+i}, v{X+i}")
    e("v_lshlrev_b32 v14, 4, v0"); e("v_lshlrev_b32 v18, 2, v0")
    e(f"ds_write_b128 v14, {v4(T)} offset:{L_XN}"); e(f"ds_write_b128 v14, {v4(T+4)} offset:{L_XN+1024}"); e(f"ds_write_b32 v18, v{T+8} offset:{L_XN+2048}")
    e("s_lshr_b32 s46, s23, 2"); e(f"s_mul_i32 s46, s46, {144*4}"); e("v_lshrrev_b32 v14, 3, v0"); e("v_lshl_add_u32 v14, v14, 2, s46")
    for t in range(18): e(f"ds_read_b32 v{140+t}, v14 offset:{L_XN+32*t}")
    e("s_waitcnt lgkmcnt(0)")
    e("s_add_u32 s28, s28, 1")
    for t in range(18):
        A = 20 + 4 * (t % 2)
        for r in range(4): e(f"v_and_b32 v{A+r}, v{4+r}, v{140+t}")
        e(f"s_waitcnt vmcnt({18-t+NPW})")
        e(f"v_mfma_f32_16x16x32_bf16 v[32:35], {v4(A)}, {v4(WQ+4*t)}, {'0' if t == 0 else 'v[32:35]'}")
    e("v_add_u32 v14, 40, v0"); e("v_and_b32 v14, 63, v14"); e("v_lshlrev_b32 v14, 2, v14")
    for r in range(4): e(f"ds_bpermute_b32 v{36+r}, v14, v{32+r}")
    e("v_mov_b32 v41, s28"); e("v_mov_b32 v43, s28"); e("v_mov_b32 v45, s28"); e("v_mov_b32 v47, s28")
    e("s_waitcnt lgkmcnt(0)")
    for r in range(4): e(f"v_add_f32 v{40+2*r}, v{32+r}, v{36+r}")
    if FA: pubA(60, 40, "")
    else: pubA(40, 40, "sc1")
    ts("qpub")
    e("v_lshlrev_b32 v8, 4, v0"); sadd(42, 40, 4096)
    poll("A", [f"global_load_dwordx4 {v4(64+4*i)}, v8, s[42:43] offset:{i*1024-4096} sc1" for i in range(8)],
         [64 + 2 * i + 1 for i in range(16)], 20, 32, ([42], lambda: pubA(40, 40, "sc1")) if FA else None)
    ts("qgot")
    if diag: e("s_mov_b32 s66, s30")
    for h in range(2):
        for k in (0, 2):
            a = 64 + 4 * h + k
            e(f"v_add_f32 v{a}, v{a}, v{a+8}"); e(f"v_add_f32 v{a}, v{a}, v{a+16}"); e(f"v_add_f32 v{a}, v{a}, v{a+24}")
        e(f"v_cvt_pk_bf16_f32 v{20+h}, v{64+4*h}, v{66+4*h}")
    e("v_lshlrev_b32 v18, 2, v0")
    e(f"ds_write_b32 v18, v20 offset:{L_Q}"); e(f"ds_write_b32 v18, v21 offset:{L_Q+256}")
    e("s_waitcnt lgkmcnt(0)"); e("s_barrier")
    ts("B2")
    if FA: late_slow("A", lambda: pubA(40, 40, "sc1"))
    e("s_cmp_lt_u32 s2, 128"); e("s_cbranch_scc0 L_c_notwo")
    for i in range(N1_WO): wo_dma(i)
    e("s_branch L_c_w")
    e("L_c_notwo:"); e("s_cmp_lt_u32 s2, 224"); e("s_cbranch_scc0 L_c_w")
    for i in range(N1_MLP): mlp_dma(i)
    e("L_c_w:")
    e("v_lshrrev_b32 v14, 5, v0"); e("v_lshlrev_b32 v14, 5, v14"); e("v_mov_b32 v29, s28")
    e("s_barrier")
    e(f"ds_read_b128 v[20:23], v14 offset:{L_MAX}"); e(f"ds_read_b128 v[24:27], v14 offset:{L_MAX+16}")
    e("s_waitcnt lgkmcnt(0)")
    e("v_max3_f32 v20, v20, v21, v22"); e("v_max3_f32 v23, v23, v24, v25"); e("v_max3_f32 v20, v20, v26, v27"); e("v_max_f32 v20, v20, v23")
    e("v_bfi_b32 v56, s38, v20, v29"); e("v_mov_b32 v58, v29"); e("v_mov_b32 v59, v29")
    e("s_barrier")
    ts("B4")
    for w in range(8): e(f"ds_read_b128 {v4(64+4*w)}, v8 offset:{L_PV+1024*w}")
    e(f"ds_read_b128 v[20:23], v14 offset:{L_L}"); e(f"ds_read_b128 v[24:27], v14 offset:{L_L+16}")
    for st in (4, 8, 16):
        if st == 4: e("s_waitcnt lgkmcnt(2)" if not diag else "s_waitcnt lgkmcnt(0)")
        for w in range(0, 32, 2 * st):
            for k in (0, 2): e(f"v_pk_add_f32 {v2(64+w+k)}, {v2(64+w+k)}, {v2(64+w+st+k)}")
    for r in range(4): e(f"v_bfi_b32 v{60+r}, s38, v{64+r}, v29")
    if FB: pubB(62, 60, "")
    else: pubB(56, 60, "sc1")
    e("s_waitcnt lgkmcnt(0)")
    e("v_pk_add_f32 v[20:21], v[20:21], v[22:23]"); e("v_pk_add_f32 v[24:25], v[24:25], v[26:27]"); e("v_pk_add_f32 v[20:21], v[20:21], v[24:25]"); e("v_add_f32 v20, v20, v21")
    e("v_bfi_b32 v57, s38, v20, v29")
    if FB: pubBS(14, 56, "")
    else: pubBS(58, 56, "sc1")
    def slowB(): pubB(56, 60, "sc1"); pubBS(58, 56, "sc1")
    ts("Bpub")
    e("s_cmp_lt_u32 s2, 128"); e("s_cbranch_scc1 L_wo")
    if FB: slowB()
    e("s_branch L_roles")
    e("L_comp1:")
    def attention(n1, dmaf):
        for i in range(D, P):
            e(f"s_waitcnt vmcnt({D-1})"); kv(i)
        e("v_lshrrev_b32 v14, 3, v2"); e("v_lshlrev_b32 v18, 8, v14"); e("v_lshl_add_u32 v18, v1, 6, v18"); e("v_and_b32 v19, 3, v0"); e("v_lshl_add_u32 v18, v19, 4, v18")
        e("v_lshlrev_b32 v14, 5, v14"); e("s_lshl_b32 s46, s3, 2"); e("s_sub_u32 s46, s46, 4"); e("v_add_u32 v19, s46, v14")
        e("s_waitcnt lgkmcnt(0)"); e("s_add_u32 s28, s28, 1"); e("v_mov_b32 v29, s28")
        e("s_barrier")
        e(f"ds_read_b128 v[20:23], v18 offset:{L_Q}")
        for i in range(max(P, D), 16): kv(i)
        e("s_waitcnt lgkmcnt(0)")
        D_ = 128
        for t in range(8):
            if t >= P - D: e(f"s_waitcnt vmcnt({8+7-t})")
            e(f"v_mfma_f32_16x16x32_bf16 {v4(D_+4*t)}, {v4(KR+4*t)}, v[20:23], 0")
        for i in range(n1): dmaf(i)
        S = 32
        for t in range(8): e(f"v_cndmask_b32 v{S+t}, v{D_+4*t}, v{D_+4*t+1}, s[32:33]")
        for t in range(8): e(f"v_cndmask_b32 v{S+t}, v{S+t}, v{D_+4*t+2}, s[34:35]")
        for t in range(8): e(f"v_cndmask_b32 v{S+t}, v{S+t}, v{D_+4*t+3}, s[36:37]")
        for t in range(8): e(f"v_add_f32_dpp v{S+t}, v{S+t}, v{S+t} quad_perm:[1,0,3,2] {DPP}")
        for t in range(8): e(f"v_add_f32_dpp v{S+t}, v{S+t}, v{S+t} quad_perm:[2,3,0,1] {DPP}")
        for rnd in range(2):
            for t in range(0, 8, 2): e(f"v_cvt_pk_bf16_f32 v{40+t}, v{S+t}, v{S+t+1}")
            for t in range(0, 8, 2): e(f"v_lshlrev_b32 v{S+t}, 16, v{40+t}"); e(f"v_and_b32 v{S+t+1}, s39, v{40+t}")
            if rnd == 0:
                for t in range(8): e(f"v_mul_f32 v{S+t}, 0x3db504f3, v{S+t}")
        e(f"v_max3_f32 v40, v{S}, v{S+1}, v{S+2}"); e(f"v_max3_f32 v41, v{S+3}, v{S+4}, v{S+5}"); e(f"v_max3_f32 v40, v40, v{S+6}, v{S+7}"); e("v_max_f32 v40, v40, v41")
        rows_allreduce("v_max_f32", 40, 41)
        e("s_mov_b64 exec, 0x101"); e(f"ds_write_b32 v19, v40 offset:{L_MAX}"); e("s_mov_b64 exec, -1")
        e("s_waitcnt lgkmcnt(0)"); e("s_barrier")
        e(f"ds_read_b128 v[20:23], v14 offset:{L_MAX}"); e(f"ds_read_b128 v[24:27], v14 offset:{L_MAX+16}")
        e("s_waitcnt lgkmcnt(0)")
        e("v_max3_f32 v20, v20, v21, v22"); e("v_max3_f32 v23, v23, v24, v25"); e("v_max3_f32 v20, v20, v26, v27"); e("v_max_f32 v20, v20, v23")
        for t in range(8): e(f"v_sub_f32 v{S+t}, v{S+t}, v20")
        for t in range(8): e(f"v_mul_f32 v{S+t}, {LOG2E}, v{S+t}")
        for t in range(8): e(f"v_exp_f32 v{S+t}, v{S+t}")
        e(f"v_add_f32 v40, v{S}, v{S+1}")
        for t in range(2, 8): e(f"v_add_f32 v40, v40, v{S+t}")
        for t in range(8): e(f"v_cvt_pk_bf16_f32 v{S+t}, v{S+t}, v{S+t}")
        rows_allreduce("v_add_f32", 40, 41)
        for t in range(8):
            for r in range(4): e(f"v_and_b32 v{D_+4*t+r}, v{4+r}, v{S+t}")
        e("s_mov_b64 exec, 0x101"); e(f"ds_write_b32 v19, v40 offset:{L_L}"); e("s_mov_b64 exec, -1")
        e("s_lshl_b32 s46, s3, 10"); e("v_add_u32 v18, s46, v8")
        for t in range(8):
            e(f"s_waitcnt vmcnt({n1+7-t})")
            e(f"v_mfma_f32_16x16x32_bf16 v[20:23], {v4(D_+4*t)}, {v4(VR+4*t)}, {'0' if t == 0 else 'v[20:23]'}")
        e(f"ds_write_b128 v18, v[20:23] offset:{L_PV-1024}")
        e("s_waitcnt lgkmcnt(0)"); e("s_barrier")
    e("s_cmp_lt_u32 s2, 128"); e("s_cbranch_scc0 L_a_notwo")
    attention(N1_WO, wo_dma); e("s_branch L_wo")
    e("L_a_notwo:"); e("s_cmp_lt_u32 s2, 224"); e("s_cbranch_scc0 L_a_free")
    attention(N1_MLP, mlp_dma); e("s_branch L_mlp")
    e("L_a_free:")
    attention(0, None); e("s_branch L_end")
    e("L_roles:")
    e("s_cmp_lt_u32 s2, 128"); e("s_cbranch_scc1 L_wo")
    e("s_cmp_lt_u32 s2, 224"); e("s_cbranch_scc1 L_mlp")
    e("s_branch L_end")
    def tr_addr(base_s):
        e("v_lshrrev_b32 v14, 2, v2"); e("v_lshl_add_u32 v14, v1, 2, v14")
        e("v_bfe_u32 v18, v14, 1, 2"); e("v_lshlrev_b32 v18, 1, v18")
        e("v_lshlrev_b32 v14, 7, v14"); e("v_and_b32 v19, 1, v0"); e("v_lshl_add_u32 v14, v19, 3, v14"); e(f"v_add_u32 v14, {base_s}, v14")
        e("v_bfe_u32 v19, v0, 1, 1")
        for t in range(4):
            e(f"v_or_b32 v24, {2*t}, v19"); e("v_xor_b32 v24, v24, v18"); e(f"v_lshl_add_u32 v{20+t}, v24, 4, v14")
    def frag_addr(base):
        e("v_lshlrev_b32 v14, 4, v1"); e(f"v_add_u32 v14, {base}, v14"); e(f"v_mov_b32 v18, {L_Z}")
        e("s_mov_b32 s44, 0x11111111"); e("s_mov_b32 s45, s44")
        for t, m in enumerate(("s[44:45]", "s[32:33]", "s[34:35]", "s[36:37]")): e(f"v_cndmask_b32 v{24+t}, v18, v14, {m}")
    def pub_addr(nrec, wsoff, prod):
        e("v_lshrrev_b32 v14, 1, v1"); e("v_lshl_add_u32 v14, v2, 1, v14"); e("s_lshl_b32 s46, s3, 3"); e("v_add_u32 v14, s46, v14")
        e(f"v_mul_u32_u24 v28, {nrec*32}, v14"); e("v_and_b32 v14, 1, v1"); e("v_lshl_add_u32 v28, v14, 4, v28")
        e(f"s_lshl_b32 s46, {prod}, 5"); e(f"s_add_u32 s46, s46, {wsoff}"); sadd(40, 26, "s46")
    def publish(acc):
        for r in range(4): e(f"v_bfi_b32 v{acc+r}, s38, v{acc+r}, v29")
        e("s_mov_b32 exec_lo, 0x000f000f"); e("s_mov_b32 exec_hi, 0x000f000f")
        e(f"global_store_dwordx4 v28, {v4(acc)}, s[40:41] sc1"); e("s_mov_b64 exec, -1")
    e("L_wo:")
    for i in range(N1_WO, 4): wo_dma(i)
    tr_addr("s47"); frag_addr(L_XF); pub_addr(128, WS_C1, "s2")
    e("s_waitcnt vmcnt(0)")
    ts("Wgot")
    for t in range(4):
        e(f"ds_read_b64_tr_b16 {v2(64+4*t)}, v{20+t}"); e(f"ds_read_b64_tr_b16 {v2(66+4*t)}, v{20+t} offset:2048")
    e("s_cmp_eq_u32 s3, 0"); e("s_cbranch_scc0 L_wo_b5")
    e("s_lshl_b32 s46, s22, 3"); e("s_add_u32 s46, s46, s23"); e("s_lshl_b32 s46, s46, 11"); e(f"s_add_u32 s46, s46, {WS_B}"); sadd(42, 26, "s46")
    e("s_lshl_b32 s46, s22, 9"); e("s_lshr_b32 s49, s23, 2"); e("s_lshl_b32 s49, s49, 8"); e("s_add_u32 s46, s46, s49"); e(f"s_add_u32 s46, s46, {WS_BS}"); sadd(44, 26, "s46")
    e("v_lshrrev_b32 v14, 3, v0"); e("v_lshlrev_b32 v14, 4, v14")
    e("v_and_b32 v18, 3, v0"); e("v_lshlrev_b32 v18, 4, v18"); e("v_bfe_u32 v19, v0, 2, 1"); e("v_lshl_add_u32 v18, v19, 3, v18"); e("v_lshl_add_u32 v18, v1, 1, v18")
    poll("B", ["global_load_dwordx4 v[96:99], v8, s[42:43] sc1", "global_load_dwordx4 v[100:103], v8, s[42:43] offset:1024 sc1",
               "global_load_dwordx4 v[104:107], v14, s[44:45] sc1", "global_load_dwordx4 v[108:111], v14, s[44:45] offset:128 sc1"],
         list(range(96, 112)), 40, 8, ([42, 44], slowB) if FB else None)
    ts("Bgot")
    if diag: e("s_lshl_b32 s31, s30, 8"); e("s_or_b32 s66, s66, s31")
    e("v_and_b32 v104, s38, v104"); e("v_and_b32 v108, s38, v108"); e("v_max_f32 v40, v104, v108")
    e(f"v_max_f32_dpp v40, v40, v40 row_ror:8 {DPP}")
    for r in list(range(96, 104)) + [105, 109]: e(f"v_and_b32 v{r}, s38, v{r}")
    rows_allreduce("v_max_f32", 40, 41)
    e("v_sub_f32 v104, v104, v40"); e("v_sub_f32 v108, v108, v40"); e(f"v_mul_f32 v104, {LOG2E}, v104"); e(f"v_mul_f32 v108, {LOG2E}, v108")
    e("v_exp_f32 v104, v104"); e("v_exp_f32 v108, v108")
    e("v_mul_f32 v40, v104, v105"); e("v_fmac_f32 v40, v108, v109")
    for r in range(4): e(f"v_mul_f32 v{96+r}, v104, v{96+r}")
    e(f"v_add_f32_dpp v40, v40, v40 row_ror:8 {DPP}")
    for r in range(4): e(f"v_fmac_f32 v{96+r}, v108, v{100+r}")
    rows_allreduce("v_add_f32", 40, 41)
    e("v_rcp_f32 v40, v40")
    red4(96, (8,))
    e("v_mul_f32 v96, v96, v40"); e("v_cvt_pk_bf16_f32 v96, v96, v96")
    e(f"ds_write_b16 v18, v96 offset:{L_XF}")
    e("L_wo_b5:")
    e("s_waitcnt lgkmcnt(0)"); e("s_barrier")
    ts("B5")
    for t in range(4): e(f"ds_read_b128 {v4(80+4*t)}, v{24+t}")
    for t in range(4):
        e(f"s_waitcnt lgkmcnt({3-t})" if not diag else "s_waitcnt lgkmcnt(0)")
        e(f"v_mfma_f32_16x16x32_bf16 v[32:35], {v4(64+4*t)}, {v4(80+4*t)}, {'0' if t == 0 else 'v[32:35]'}")
    publish(32)
    ts("C1pub")
    e("s_cmp_eq_u32 s3, 0"); e("s_cbranch_scc0 L_end")
    if FB: late_slow("B", slowB)
    e("s_cmp_lt_u32 s2, 72"); e("s_cbranch_scc0 L_end")
    e("s_lshl_b32 s46, s2, 12"); e(f"s_add_u32 s46, s46, {WS_C1}"); sadd(42, 26, "s46")
    e("s_lshl_b32 s46, s2, 5"); e(f"s_add_u32 s46, s46, {WS_C2}"); sadd(44, 26, "s46")
    e("v_lshrrev_b32 v14, 1, v2"); e("v_lshlrev_b32 v14, 12, v14"); e("v_and_b32 v18, 1, v0"); e("v_lshl_add_u32 v14, v18, 4, v14"); e("v_lshl_add_u32 v14, v1, 2, v14")
    e("v_lshlrev_b32 v17, 16, v17")
    def gather_sum(name, n):
        poll(name, [f"global_load_dwordx4 {v4(96+4*i)}, v8, s[42:43] offset:{1024*i} sc1" for i in range(n)], list(range(96, 96 + 4 * n)), 40, 8)
        if name == "C1": ts("C1got")
        if diag: e(f"s_lshl_b32 s31, s30, {16 if name == 'C1' else 24}"); e("s_or_b32 s66, s66, s31")
        for r in range(4 * n): e(f"v_and_b32 v{96+r}, s38, v{96+r}")
        if n == 4:
            for k in (0, 2): e(f"v_pk_add_f32 {v2(104+k)}, {v2(104+k)}, {v2(108+k)}")
        for i in (1, 2):
            for k in (0, 2): e(f"v_pk_add_f32 {v2(96+k)}, {v2(96+k)}, {v2(96+4*i+k)}")
        red4(96, (8, 4, 2))
        rbf(96, 96)
        e("v_add_f32 v17, v17, v96"); e("v_cvt_pk_bf16_f32 v17, v17, v17")
    gather_sum("C1", 4)
    e("v_bfi_b32 v18, s39, v17, v29")
    e("global_store_dword v14, v18, s[44:45] sc1")
    e("v_and_b32 v17, s39, v17")
    e(f"s_mul_i32 s46, s2, {96*32}"); e(f"s_add_u32 s46, s46, {WS_D}"); sadd(42, 26, "s46")
    gather_sum("D", 3)
    e("s_mov_b32 exec_lo, 0x00030003"); e("s_mov_b32 exec_hi, 0x00030003")
    e("global_store_short v16, v17, s[20:21]")
    e("s_cmp_eq_u32 s2, 0"); e("s_cbranch_scc0 L_end")
    e("s_mov_b64 exec, 1"); e("v_mov_b32 v14, 0"); e("global_store_dword v14, v29, s[26:27] sc1")
    e("s_branch L_end")
    e("L_mlp:")
    if MT:
        seg = MT
        n = seg // 16
        e(f"v_lshrrev_b32 v14, {n.bit_length()-1}, v0"); e("v_mul_u32_u24 v11, 9216, v14"); e(f"v_and_b32 v14, {n-1}, v0"); e("v_lshl_add_u32 v11, v14, 4, v11")
        e("s_mul_i32 s46, s29, 96"); e("s_sub_u32 s16, s16, s46"); e("s_subb_u32 s17, s17, 0"); e("s_min_u32 s46, s29, 71");e(f"s_mul_i32 s46, s46, {seg}"); sadd(16, 16, "s46")
        for i in range(n):
            e(f"s_add_u32 s49, s47, {(i%6)*1024}"); dma(11, 16, "s49")
            if i < n - 1: sadd(16, 16, (64 // n) * 9216)
        for i in range(min(n, 6)): w2_dma(i)
    else:
        for i in range(N1_MLP, 12): mlp_dma(i)
    tr_addr("s48")
    e("s_lshl_b32 s49, s3, 7"); e(f"s_add_u32 s49, s49, {L_H1}")
    frag_addr("s49"); pub_addr(96, WS_D, "s29")
    e("v_lshrrev_b32 v14, 2, v2"); e("v_lshl_add_u32 v14, v1, 2, v14"); e("v_mul_u32_u24 v30, 96, v14"); e("v_and_b32 v14, 3, v0"); e("v_lshl_add_u32 v30, v14, 3, v30"); e("v_add_u32 v30, s47, v30")
    e("s_lshl_b32 s46, s3, 7"); e("v_lshlrev_b32 v31, 4, v1"); e("v_add_u32 v31, s46, v31")
    e("s_mul_i32 s46, s3, 192"); e("v_lshlrev_b32 v32, 4, v1"); e("v_add_u32 v32, s46, v32")
    e("v_min_u32 v33, 47, v0"); e("v_lshlrev_b32 v33, 2, v33")
    e("v_bfe_u32 v14, v0, 2, 2"); e("v_lshlrev_b32 v34, 4, v14"); e("v_bfe_u32 v14, v0, 4, 1"); e("v_lshl_add_u32 v34, v14, 3, v34"); e("v_and_b32 v14, 3, v0"); e("v_lshl_add_u32 v34, v14, 1, v34")
    e("v_lshrrev_b32 v14, 5, v0"); e("v_lshl_add_u32 v34, v14, 6, v34"); e("v_add_u32 v34, s49, v34")
    W1F, W2F = 64, 96
    for t in range(4): e(f"v_mov_b32 v{W2F+8*t+6}, 0"); e(f"v_mov_b32 v{W2F+8*t+7}, 0")
    e("s_waitcnt vmcnt(6)")
    for ks in range(2):
        for t in range(3):
            r = W1F + 4 * (3 * ks + t); o = ks * 32 * 96 + 32 * t
            e(f"ds_read_b64_tr_b16 {v2(r)}, v30 offset:{o}"); e(f"ds_read_b64_tr_b16 {v2(r+2)}, v30 offset:{o+16*96}")
    e("s_waitcnt vmcnt(0)")
    ts("Wgot")
    for t in range(4):
        for k in range(3): e(f"ds_read_b64_tr_b16 {v2(W2F+8*t+2*k)}, v{20+t} offset:{2048*k}")
    e("s_cmp_eq_u32 s3, 0"); e("s_cbranch_scc0 L_mlp_b5")
    e("s_and_b32 s46, s2, 7"); e("s_lshl_b32 s46, s46, 12"); e(f"s_add_u32 s46, s46, {WS_C2}"); sadd(42, 26, "s46")
    e("v_lshlrev_b32 v9, 2, v0")
    e("v_lshrrev_b32 v14, 3, v0"); e("v_lshlrev_b32 v18, 6, v14"); e("v_and_b32 v14, 3, v0"); e("v_lshl_add_u32 v18, v14, 4, v18"); e("v_bfe_u32 v14, v0, 2, 1"); e("v_lshl_add_u32 v18, v14, 3, v18")
    e("v_subrev_u32 v19, s49, v34")
    X, T = 128, 140
    poll("C2", [f"global_load_dwordx4 {v4(X)}, v8, s[42:43] sc1", f"global_load_dwordx4 {v4(X+4)}, v8, s[42:43] offset:1024 sc1", f"global_load_dword v{X+8}, v9, s[42:43] offset:2048 sc1"],
         list(range(X, X + 9)), 40, 16)
    ts("C2got")
    if diag: e("s_lshl_b32 s31, s30, 8"); e("s_or_b32 s66, s66, s31")
    for i in range(9): e(f"v_and_b32 v{X+i}, s39, v{X+i}")
    layernorm(X, T)
    for i in range(4): e(f"v_cvt_pk_bf16_f32 v{T+i}, v{X+2*i}, v{X+2*i+1}")
    e(f"v_cvt_pk_bf16_f32 v{T+4}, v{X+8}, v{X+8}")
    e(f"ds_write_b64 v18, {v2(T)} offset:{L_HN}"); e(f"ds_write_b64 v18, {v2(T+2)} offset:{L_HN+512}"); e(f"ds_write_b16 v19, v{T+4} offset:{L_HN+1024}")
    e("L_mlp_b5:")
    e("s_waitcnt lgkmcnt(0)"); e("s_barrier")
    ts("B5")
    e(f"ds_read_b128 v[36:39], v31 offset:{L_HN}"); e(f"ds_read_b128 v[40:43], v31 offset:{L_HN+64}")
    e("s_waitcnt lgkmcnt(0)")
    for ks in range(2):
        for t in range(3): e(f"v_mfma_f32_16x16x32_bf16 {v4(44+4*t)}, {v4(W1F+4*(3*ks+t))}, {v4(36+4*ks)}, {'0' if ks == 0 else v4(44+4*t)}")
    e("s_mov_b32 exec_lo, 0x00010001"); e("s_mov_b32 exec_hi, 0x00010001")
    for t in range(3): e(f"ds_write_b128 v32, {v4(44+4*t)} offset:{L_Y+64*t}")
    e("s_mov_b64 exec, -1")
    e("s_waitcnt lgkmcnt(0)"); e("s_barrier")
    for w in range(9): e(f"ds_read_b32 v{44+w}, v33 offset:{L_Y+192*w}")
    e("s_waitcnt lgkmcnt(0)")
    for a, b in ((44, 45), (46, 47), (48, 49), (50, 51), (44, 46), (48, 50), (44, 52), (44, 48)): e(f"v_add_f32 v{a}, v{a}, v{b}")
    e("v_max_f32 v44, 0, v44"); e("v_cvt_pk_bf16_f32 v44, v44, v44")
    e("s_mov_b32 s44, 0"); e("s_mov_b32 s45, 0xffff0000"); e("v_cndmask_b32 v44, v44, 0, s[44:45]")
    e("ds_write_b16 v34, v44")
    for t in range(4): e(f"ds_read_b128 {v4(128+8*t)}, v{24+t}"); e(f"ds_read_b128 {v4(132+8*t)}, v{24+t} offset:64")
    e("s_waitcnt lgkmcnt(0)")
    for t in range(4):
        for k in range(2): e(f"v_mfma_f32_16x16x32_bf16 v[36:39], {v4(W2F+8*t+4*k)}, {v4(128+8*t+4*k)}, {'0' if t + k == 0 else 'v[36:39]'}")
    publish(36)
    ts("Dpub")
    e("L_end:")
    if diag:
        e("s_mov_b64 exec, -1")
        ts("end"); e("s_waitcnt lgkmcnt(0)")
        for i in range(16): e(f"v_writelane_b32 v1, s{64+2*i}, {i}")
        e("s_mul_i32 s46, s2, 9"); e("s_add_u32 s46, s46, s3"); e("s_lshl_b32 s46, s46, 6"); e(f"s_add_u32 s46, s46, {512<<20}"); sadd(40, 26, "s46")
        e("v_lshlrev_b32 v2, 2, v0"); e("s_mov_b64 exec, 0xffff"); e("global_store_dword v2, v1, s[40:41]")
        if dbgts is not None:
            e(f"s_cmp_eq_u32 s2, {dbgts}"); e("s_cbranch_scc0 L_exit"); e("s_cmp_eq_u32 s3, 0"); e("s_cbranch_scc0 L_exit")
            e("global_store_dword v2, v1, s[24:25]")
    e("L_exit:")
    e("s_endpgm")
    body = "\n".join(pad(L))
    hdr = open("cdna_kernels/" + KN[:-7] + ".s.ref").read().split("; Override launch")[0]
    hdr += f"; @launch grid=(256,1,1) block=(576,1,1) lds={LDS}\n"
    if diag: hdr += "; @ts " + " ".join(TS) + "\n"
    return hdr + f""".amdgcn_target "amdgcn-amd-amdhsa--gfx950"
.text
.globl {KN}
.p2align 8
.type {KN},@function
{KN}:
{body}
.section .rodata,"a"
.p2align 6
.amdhsa_kernel {KN}
  .amdhsa_next_free_vgpr 168
  .amdhsa_next_free_sgpr 102
  .amdhsa_accum_offset 168
  .amdhsa_group_segment_fixed_size 0
  .amdhsa_kernarg_size 88
  .amdhsa_user_sgpr_count 2
  .amdhsa_user_sgpr_kernarg_segment_ptr 1
  .amdhsa_system_sgpr_workgroup_id_x 1
.end_amdhsa_kernel
"""
if __name__ == "__main__":
    import ast
    if len(sys.argv) > 1:
        for a in sys.argv[1:]:
            n, _, kw = a.partition(":")
            kw = dict((k.split("=")[0], ast.literal_eval(k.split("=")[1])) for k in kw.split(",") if k)
            open(f"exp/{n}.s", "w").write(gen(**kw))
    else:
        open("k_diag.s", "w").write(gen(diag=True))
        open("k_dbg.s", "w").write(gen(diag=True, dbgts=0))
        open("cdna_kernels/" + KN[:-7] + ".s", "w").write(gen())
```

```python
import sys
from asmlib import pad
KN = "sequential_preLN__sliding_block_cached__dense_activation_relu__decode_kernel"
WS_A, WS_B, WS_BS, WS_C1, WS_C2, WS_D = 0x1000, 0x40000, 0x90000, 0x100000, 0x180000, 0x200000
L_XN, L_Q, L_MAX, L_L, L_Z, L_XF, L_HN, L_Y, L_H1, L_PV, L_W = 0, 2560, 3072, 3136, 3328, 3456, 4096, 6144, 8192, 12288, 20480
LDS = L_W + 9 * 8192
SPIN = 30000
FAST = 0x300000
LOG2E = "0x3fb8aa3b"
DPP = "row_mask:0xf bank_mask:0xf"
TS = ["start", "wq_iss", "x", "qpub", "qgot", "B2", "B4", "Bpub", "Bgot", "B5", "C1pub", "C1got", "Wgot", "C2got", "Dpub", "end"]

def gen(diag=False, dbgts=None, D=3, PX=2, PF=1, FA=1, FB=1, WB=1, P2=0, PT=1, SF='sc1', LF='sc1', XR=0, EW=0, WARM=1):
    L = []; e = L.append
    def ts(name):
        if diag: i = TS.index(name); e(f"s_memrealtime s[{64+2*i}:{65+2*i}]")
    def sadd(d, a, off):
        e(f"s_add_u32 s{d}, s{a}, {off}"); e(f"s_addc_u32 s{d+1}, s{a+1}, 0")
    def v4(r): return f"v[{r}:{r+3}]"
    def v2(r): return f"v[{r}:{r+1}]"
    def wave_sum2(a, b, sa, sb):
        for r in (8, 4, 2, 1):
            for x in (a, b):
                if x is not None: e(f"v_add_f32_dpp v{x}, v{x}, v{x} row_ror:{r} {DPP}")
        for x in (a, b):
            if x is not None: e(f"v_add_f32_dpp v{x}, v{x}, v{x} row_bcast:15 row_mask:0xa bank_mask:0xf")
        for x in (a, b):
            if x is not None: e(f"v_add_f32_dpp v{x}, v{x}, v{x} row_bcast:31 row_mask:0xc bank_mask:0xf")
        e(f"v_readlane_b32 s{sa}, v{a}, 63")
        if b is not None: e(f"v_readlane_b32 s{sb}, v{b}, 63")
    def rbf(d, s):
        e(f"v_cvt_pk_bf16_f32 v{d}, v{s}, v{s}"); e(f"v_and_b32 v{d}, s39, v{d}")
    def layernorm(X, T, onepass=False):
        e(f"v_add_f32 v{T}, v{X}, v{X+1}")
        if onepass: e(f"v_mul_f32 v{T+2}, v{X}, v{X}")
        for i in range(2, 9):
            e(f"v_add_f32 v{T}, v{T}, v{X+i}")
            if onepass: e(f"v_fmac_f32 v{T+2}, v{X+i-1}, v{X+i-1}")
        if onepass:
            e(f"v_fmac_f32 v{T+2}, v{X+8}, v{X+8}")
            wave_sum2(T, T + 2, 46, 31)
            e(f"v_mov_b32 v{T}, 0x3ae38e39"); e(f"v_mul_f32 v{T+1}, s46, v{T}"); e(f"v_mul_f32 v{T}, s31, v{T}")
            e(f"v_fma_f32 v{T}, -v{T+1}, v{T+1}, v{T}"); e(f"v_max_f32 v{T}, 0, v{T}")
            rbf(T + 1, T + 1)
            for i in range(9): e(f"v_sub_f32 v{X+i}, v{X+i}, v{T+1}")
        else:
            wave_sum2(T, None, 46, None)
            e(f"v_mov_b32 v{T+1}, 0x3ae38e39")
            e(f"v_mul_f32 v{T+1}, s46, v{T+1}")
            for i in range(9): e(f"v_sub_f32 v{T+2+i}, v{X+i}, v{T+1}")
            e(f"v_mul_f32 v{T}, v{T+2}, v{T+2}")
            for i in range(1, 9): e(f"v_fmac_f32 v{T}, v{T+2+i}, v{T+2+i}")
            rbf(T + 1, T + 1)
            wave_sum2(T, None, 46, None)
            for i in range(9): e(f"v_sub_f32 v{X+i}, v{X+i}, v{T+1}")
            e(f"v_mov_b32 v{T}, 0x3ae38e39"); e(f"v_mul_f32 v{T}, s46, v{T}")
        rbf(T, T)
        e(f"v_add_f32 v{T}, 0x3727c5ac, v{T}")
        rbf(T, T)
        e(f"v_sqrt_f32 v{T}, v{T}")
        for i in range(0, 8, 2):
            e(f"v_cvt_pk_bf16_f32 v{T+2}, v{X+i}, v{X+i+1}"); e(f"v_lshlrev_b32 v{X+i}, 16, v{T+2}"); e(f"v_and_b32 v{X+i+1}, s39, v{T+2}")
        rbf(X + 8, X + 8)
        rbf(T, T)
        e(f"v_rcp_f32 v{T+1}, v{T}")
        for i in range(9): e(f"v_mul_f32 v{T+2+i}, v{X+i}, v{T+1}")
        for i in range(9): e(f"v_fma_f32 v{X+i}, -v{T+2+i}, v{T}, v{X+i}")
        for i in range(9): e(f"v_fma_f32 v{X+i}, v{X+i}, v{T+1}, v{T+2+i}")
    def poll(name, loads, check, vt, cmp, dual=None, mask=None):
        e("s_mov_b32 s30, 0")
        if dual:
            for i, b in enumerate(dual[0]): e(f"s_mov_b64 s[{52+2*i}:{53+2*i}], s[{b}:{b+1}]")
        e(f"L_poll_{name}:")
        if dual:
            e("s_and_b32 s31, s30, 31"); e("s_cmp_eq_u32 s31, 31"); e(f"s_cselect_b32 s31, 0, {FAST}")
            for i, b in enumerate(dual[0]): sadd(b, 52 + 2 * i, "s31")
            e("s_cmp_eq_u32 s30, 24"); e(f"s_cbranch_scc0 L_nsp_{name}"); dual[1](); e(f"L_nsp_{name}:")
        for l in loads: e(l)
        e("s_add_u32 s30, s30, 1"); e(f"s_cmp_gt_u32 s30, {SPIN}"); e("s_cbranch_scc1 L_end")
        e("s_waitcnt vmcnt(0)")
        acc = vt; first = True; c = list(check)
        while c:
            if first: e(f"v_bitop3_b32 v{acc}, v{c[0]}, v{c[1]}, s28 bitop3:0x7e"); c = c[2:]; first = False
            else: e(f"v_bitop3_b32 v{acc}, v{c[0]}, s28, v{acc} bitop3:0xbe"); c = c[1:]
        if cmp == 32: e(f"v_cmp_ne_u32 vcc, 0, v{acc}")
        elif cmp == 16: e(f"v_cmp_ne_u16 vcc, 0, v{acc}")
        else: e(f"v_and_b32 v{acc}, 0xff, v{acc}"); e(f"v_cmp_ne_u32 vcc, 0, v{acc}")
        if mask: e(f"s_and_b64 vcc, vcc, {mask}")
        e(f"s_cbranch_vccnz L_poll_{name}")
    def late_slow(name, f):
        e("s_cmp_le_u32 s30, 24"); e(f"s_cbranch_scc0 L_nsq_{name}"); f(); e(f"L_nsq_{name}:")
    def dma(voff, sb, lds):
        e(f"s_mov_b32 m0, {lds}" if isinstance(lds, int) else f"s_mov_b32 m0, {lds}")
        e(f"global_load_lds_dwordx4 v{voff}, s[{sb}:{sb+1}] nt")
    def wo_dma(i):
        e(f"s_add_u32 s49, s47, {i*1024}"); dma(10, 12, "s49"); sadd(12, 12, 8 * 1152)
    def w1_dma(i):
        e(f"s_add_u32 s49, s47, {i*1024}"); dma(11, 16, "s49"); sadd(16, 16, 16 * 9216)
    def w2_dma(i):
        e(f"s_add_u32 s49, s47, {4096+i*1024}"); dma(10, 18, "s49"); sadd(18, 18, 8 * 1152)
    def red4(a, rors):
        e(f"v_permlane16_swap_b32 v{a}, v{a+1}"); e(f"v_permlane16_swap_b32 v{a+2}, v{a+3}")
        e(f"v_add_f32 v{a}, v{a}, v{a+1}"); e(f"v_add_f32 v{a+2}, v{a+2}, v{a+3}")
        e(f"v_permlane32_swap_b32 v{a}, v{a+2}"); e(f"v_add_f32 v{a}, v{a}, v{a+2}")
        for r in rors: e(f"v_add_f32_dpp v{a}, v{a}, v{a} row_ror:{r} {DPP}")
    def rows_allreduce(op, x, t):
        e(f"v_mov_b32 v{t}, v{x}"); e(f"v_permlane16_swap_b32 v{t}, v{x}"); e(f"{op} v{x}, v{x}, v{t}")
        e(f"v_mov_b32 v{t}, v{x}"); e(f"v_permlane32_swap_b32 v{t}, v{x}"); e(f"{op} v{x}, v{x}, v{t}")

    def wvoff():
        e("v_lshrrev_b32 v14, 3, v0"); e("v_mul_u32_u24 v10, 1152, v14"); e("v_lshlrev_b32 v18, 1, v1"); e("v_xor_b32 v18, v18, v3"); e("v_lshl_add_u32 v10, v18, 4, v10")
        e("v_lshrrev_b32 v14, 2, v0"); e("v_mul_u32_u24 v11, 9216, v14"); e("v_and_b32 v14, 3, v0"); e("v_lshl_add_u32 v11, v14, 4, v11")
    def wbase():
        e("s_lshl_b32 s46, s22, 2"); e("s_add_u32 s46, s46, s23"); e(f"s_mul_i32 s46, s46, {64*1152}"); e("s_lshl_b32 s47, s3, 7"); e("s_add_u32 s46, s46, s47")
        sadd(12, 12, "s46")
        e("s_and_b32 s29, s2, 7"); e("s_mul_i32 s29, s29, 18"); e("s_lshr_b32 s46, s22, 3"); e("s_mul_i32 s46, s46, 9"); e("s_add_u32 s29, s29, s46"); e("s_add_u32 s29, s29, s23"); e("s_sub_u32 s29, s29, 4")
        e(f"s_mul_i32 s46, s29, {32*1152}"); e("s_add_u32 s46, s46, s47"); sadd(18, 18, "s46")
        e(f"s_mul_i32 s46, s3, {64*9216}"); e("s_lshl_b32 s47, s29, 6"); e("s_add_u32 s46, s46, s47"); sadd(16, 16, "s46")
        e("s_lshl_b32 s47, s3, 13"); e(f"s_add_u32 s47, s47, {L_W}")
    ts("start")
    if diag:
        for i in range(1, 16): e(f"s_mov_b32 s{64+2*i}, 0")
    e("s_cmp_ge_u32 s2, 256"); e("s_cbranch_scc1 L_exit")
    e("s_load_dwordx16 s[4:19], s[0:1], 0")
    e("s_load_dwordx2 s[20:21], s[0:1], 64")
    e("s_load_dwordx4 s[24:27], s[0:1], 72")
    e("v_lshrrev_b32 v1, 6, v0"); e("v_and_b32 v0, 63, v0"); e("v_readfirstlane_b32 s3, v1")
    e("s_and_b32 s22, s2, 15"); e("s_lshr_b32 s23, s2, 4")
    e("s_mov_b32 s38, 0xffffff00"); e("s_mov_b32 s39, 0xffff0000")
    e("v_lshrrev_b32 v1, 4, v0"); e("v_and_b32 v2, 15, v0"); e("v_and_b32 v3, 7, v0")
    e("s_cmp_eq_u32 s3, 0"); e("s_cbranch_scc0 L_comp0")
    e("s_mov_b32 s96, 0")
    e("s_setprio 3")
    e("v_lshlrev_b32 v8, 3, v0"); e("v_lshlrev_b32 v9, 1, v0")
    e("v_lshrrev_b32 v14, 3, v0"); e("v_lshlrev_b32 v15, 13, v14"); e("v_lshl_add_u32 v15, v3, 4, v15")
    e("s_lshr_b32 s46, s23, 2"); e(f"s_mul_i32 s47, s46, {144*8192}"); e("s_lshl_b32 s48, s22, 9"); e("s_add_u32 s47, s47, s48")
    e("s_and_b32 s48, s23, 3"); e("s_lshl_b32 s48, s48, 7"); e("s_add_u32 s47, s47, s48")
    e("s_waitcnt lgkmcnt(0)")
    e("global_load_dwordx2 v[20:21], v8, s[4:5]"); e("global_load_dwordx2 v[22:23], v8, s[4:5] offset:512"); e("global_load_ushort v28, v9, s[4:5] offset:1024")
    e("s_load_dword s28, s[26:27], 0")
    sadd(10, 10, "s47")
    WQ = 64
    for t in range(18):
        e(f"global_load_dwordx4 {v4(WQ+4*t)}, v15, s[10:11] nt")
        if t < 17: sadd(10, 10, 65536)
    e("s_barrier")
    e("s_branch L_common")
    e("L_comp0:")
    e("s_mov_b32 s96, 1")
    e("s_cmp_lt_u32 s23, 4"); e("s_cselect_b32 s46, 5, 9"); e(f"s_cselect_b32 s48, 0, {(640-4*288)*256 & 0xffffffff}")
    e("s_lshl_b32 s47, s23, 3"); e("s_add_u32 s47, s47, s3"); e("s_sub_u32 s47, s47, 1"); e("s_mul_i32 s46, s46, s47"); e("s_lshl_b32 s46, s46, 10"); e("s_add_u32 s46, s46, s48")
    e("s_lshl_b32 s47, s22, 24"); e("s_add_u32 s46, s46, s47"); e(f"s_add_u32 s46, s46, {61440*256 + 4096}")
    e("v_lshlrev_b32 v8, 4, v0"); e("v_add_u32 v17, 1024, v8")
    e("v_bfe_u32 v9, v0, 2, 2"); e("v_lshlrev_b32 v9, 8, v9"); e("v_lshl_add_u32 v9, v1, 6, v9"); e("v_and_b32 v14, 3, v0"); e("v_lshl_add_u32 v9, v14, 4, v9"); e("v_add_u32 v15, 1024, v9")
    wvoff()
    e("s_waitcnt lgkmcnt(0)")
    e("s_load_dword s28, s[26:27], 0")
    sadd(6, 6, "s46"); sadd(8, 8, "s46")
    KR, VR = 52, 88
    wbase()
    if PF:
        e("s_cmp_eq_u32 s3, 8"); e("s_cbranch_scc0 L_nopf")
        e("s_getpc_b64 s[50:51]")
        e("L_pc:")
        e("v_lshlrev_b32 v14, 7, v0"); e("v_add_u32 v18, 8192, v14"); e("v_min_u32 v18, L_exit-L_pc, v18"); e("v_min_u32 v14, L_exit-L_pc, v14")
        e("global_load_dword v30, v14, s[50:51]"); e("global_load_dword v31, v18, s[50:51]")
        e("L_nopf:")
    e("s_barrier")
    def ld(R, va, vb, sb, t):
        e(f"global_load_dwordx4 {v4(R+4*t)}, v{va if t < 8 else vb}, s[{sb}:{sb+1}] offset:{min(t,7)*1024-4096} nt")
    def seq(nt, wo):
        l = [(lambda i=i: wo_dma(i)) for i in range(8)] if wo else []
        l += [(lambda t=t: ld(KR, 9, 15, 6, t)) for t in range(nt)]
        ke = len(l)
        return l + [(lambda t=t: ld(VR, 8, 17, 8, t)) for t in range(nt)], ke
    e("s_cmp_lt_u32 s2, 64"); e("s_cbranch_scc0 L_first_kv")
    for i in range(D): wo_dma(i)
    e("s_branch L_common")
    e("L_first_kv:")
    for i in range(D): seq(9, False)[0][i]()
    e("L_common:")
    for r in range(4):
        e(f"v_mov_b32 v{4+r}, 0")
    e("v_and_b32 v14, 1, v0"); e("v_mov_b32 v18, 0xffff"); e("v_lshlrev_b32 v14, 4, v14"); e("v_lshlrev_b32 v18, v14, v18")
    for r in range(4):
        m = 0x0303030303030303 << (2 * r)
        e(f"s_mov_b32 exec_lo, {hex(m & 0xffffffff)}"); e(f"s_mov_b32 exec_hi, {hex(m & 0xffffffff)}"); e(f"v_mov_b32 v{4+r}, v18")
    e("s_mov_b64 exec, -1")
    e("s_mov_b32 s32, 0x22222222"); e("s_mov_b32 s33, s32"); e("s_mov_b32 s34, 0x44444444"); e("s_mov_b32 s35, s34"); e("s_mov_b32 s36, 0x88888888"); e("s_mov_b32 s37, s36")
    e("s_cmp_eq_u32 s96, 0"); e("s_cbranch_scc0 L_comp1")
    wvoff(); wbase()
    e("s_lshl_b32 s46, s22, 13"); e(f"s_add_u32 s46, s46, {WS_A}"); sadd(40, 26, "s46")
    e("s_lshl_b32 s46, s23, 9"); e("v_lshlrev_b32 v160, 6, v3"); e("v_lshl_add_u32 v160, v1, 5, v160"); e("v_add_u32 v160, s46, v160")
    e("s_lshl_b32 s46, s22, 14"); e("s_lshl_b32 s49, s23, 8"); e("s_add_u32 s46, s46, s49"); e(f"s_add_u32 s46, s46, {WS_B}"); sadd(56, 26, "s46")
    e("v_lshrrev_b32 v14, 5, v0"); e("v_lshrrev_b32 v161, 3, v2"); e("v_lshl_add_u32 v161, v14, 1, v161"); e("v_lshlrev_b32 v161, 12, v161")
    e("v_lshl_add_u32 v161, v3, 5, v161"); e("v_and_b32 v19, 1, v1"); e("v_lshl_add_u32 v161, v19, 4, v161")
    e("s_lshl_b32 s46, s22, 8"); e("s_lshl_b32 s49, s23, 3"); e("s_add_u32 s46, s46, s49"); e(f"s_add_u32 s46, s46, {WS_BS}"); sadd(58, 26, "s46")
    e("v_lshlrev_b32 v162, 7, v14")
    sadd(60, 40, FAST); sadd(62, 56, FAST); sadd(14, 58, FAST)
    def pubA(sb, r, fl):
        e("s_mov_b64 exec, 0x00ff00ff")
        e(f"global_store_dwordx4 v160, {v4(r)}, s[{sb}:{sb+1}] {fl}"); e(f"global_store_dwordx4 v160, {v4(r+4 if r != 52 else r)}, s[{sb}:{sb+1}] offset:16 {fl}")
        e("s_mov_b64 exec, -1")
    def pubB(sb, r, fl): e(f"global_store_dwordx4 v161, {v4(r)}, s[{sb}:{sb+1}] {fl}")
    def pubBS(sb, r, fl):
        e("s_mov_b32 exec_lo, 1"); e("s_mov_b32 exec_hi, 1"); e(f"global_store_dwordx2 v162, {v2(r)}, s[{sb}:{sb+1}] {fl}"); e("s_mov_b64 exec, -1")
    NPW = 2 * FA + 2 * FB
    e("s_waitcnt lgkmcnt(0)")
    for r in range(4): e(f"v_mov_b32 v{52+r}, s28")
    if FA: pubA(60, 52, "")
    if FB: pubB(62, 52, ""); pubBS(14, 52, "")
    e(f"s_waitcnt vmcnt({18+NPW})")
    ts("x")
    X, T = 30, 40
    for i, r in enumerate((20, 21, 22, 23)):
        e(f"v_lshlrev_b32 v{X+2*i}, 16, v{r}"); e(f"v_and_b32 v{X+2*i+1}, s39, v{r}")
    e(f"v_lshlrev_b32 v{X+8}, 16, v28")
    layernorm(X, T)
    for i in range(9): e(f"v_cvt_pk_bf16_f32 v{T+i}, v{X+i}, v{X+i}")
    e("v_lshlrev_b32 v14, 4, v0"); e("v_lshlrev_b32 v18, 2, v0")
    e(f"ds_write_b128 v14, {v4(T)} offset:{L_XN}"); e(f"ds_write_b128 v14, {v4(T+4)} offset:{L_XN+1024}"); e(f"ds_write_b32 v18, v{T+8} offset:{L_XN+2048}")
    e("s_lshr_b32 s46, s23, 2"); e(f"s_mul_i32 s46, s46, {144*4}"); e("v_lshrrev_b32 v14, 3, v0"); e("v_lshl_add_u32 v14, v14, 2, s46")
    for t in range(18): e(f"ds_read_b32 v{140+t}, v14 offset:{L_XN+32*t}")
    e("s_waitcnt lgkmcnt(0)")
    e("s_add_u32 s28, s28, 1")
    for t in range(18):
        A = 20 + 4 * (t % 2)
        for r in range(4): e(f"v_and_b32 v{A+r}, v{4+r}, v{140+t}")
        e(f"s_waitcnt vmcnt({17-t+NPW})")
        e(f"v_mfma_f32_16x16x32_bf16 v[32:35], {v4(A)}, {v4(WQ+4*t)}, {'0' if t == 0 else 'v[32:35]'}")
    e("v_add_u32 v14, 40, v0"); e("v_and_b32 v14, 63, v14"); e("v_lshlrev_b32 v14, 2, v14")
    for r in range(4): e(f"ds_bpermute_b32 v{36+r}, v14, v{32+r}")
    e("v_mov_b32 v41, s28"); e("v_mov_b32 v43, s28"); e("v_mov_b32 v45, s28"); e("v_mov_b32 v47, s28")
    e("s_waitcnt lgkmcnt(0)")
    for r in range(4): e(f"v_add_f32 v{40+2*r}, v{32+r}, v{36+r}")
    if FA: pubA(60, 40, "")
    else: pubA(40, 40, "sc1")
    ts("qpub")
    e("v_lshlrev_b32 v8, 4, v0"); sadd(42, 40, 4096)
    poll("A", [f"global_load_dwordx4 {v4(64+4*i)}, v8, s[42:43] offset:{i*1024-4096} sc1" for i in range(8)],
         [64 + 2 * i + 1 for i in range(16)], 20, 32, ([42], lambda: pubA(40, 40, "sc1")) if FA else None)
    ts("qgot")
    if diag: e("s_mov_b32 s66, s30")
    for h in range(2):
        for k in (0, 2):
            a = 64 + 4 * h + k
            e(f"v_add_f32 v{a}, v{a}, v{a+8}"); e(f"v_add_f32 v{a}, v{a}, v{a+16}"); e(f"v_add_f32 v{a}, v{a}, v{a+24}")
        e(f"v_cvt_pk_bf16_f32 v{20+h}, v{64+4*h}, v{66+4*h}")
    e("v_lshlrev_b32 v18, 2, v0")
    e(f"ds_write_b32 v18, v20 offset:{L_Q}"); e(f"ds_write_b32 v18, v21 offset:{L_Q+256}")
    e("s_waitcnt lgkmcnt(0)"); e("s_barrier")
    ts("B2")
    if FA: late_slow("A", lambda: pubA(40, 40, "sc1"))
    e("s_lshl_b32 s46, s22, 2"); e("s_add_u32 s46, s46, s23"); e("s_lshl_b32 s46, s46, 12"); e(f"s_add_u32 s46, s46, {WS_B}"); sadd(42, 26, "s46")
    e("s_lshl_b32 s46, s22, 8"); e("s_lshr_b32 s49, s23, 1"); e("s_lshl_b32 s49, s49, 7"); e("s_add_u32 s46, s46, s49"); e(f"s_add_u32 s46, s46, {WS_BS}"); sadd(44, 26, "s46")
    e("v_and_b32 v19, 3, v0"); e("v_lshl_add_u32 v163, v19, 2, v1"); e("v_lshlrev_b32 v163, 3, v163")
    e("v_lshlrev_b32 v164, 4, v19"); e("v_bfe_u32 v19, v0, 2, 1"); e("v_lshl_add_u32 v164, v19, 3, v164"); e("v_lshl_add_u32 v164, v1, 1, v164"); e("v_bfe_u32 v19, v0, 3, 1"); e("v_lshl_add_u32 v164, v19, 6, v164")
    e("s_cmp_lt_u32 s2, 64"); e("s_cbranch_scc0 L_c_nwo")
    for i in range(8): wo_dma(i)
    bl = lambda a, b: [f"global_load_dwordx2 v[112:113], v163, s[{b}:{b+1}] sc1"] + [f"global_load_dwordx4 {v4(96+4*i)}, v8, s[{a}:{a+1}] offset:{1024*i} sc1" for i in range(4)]
    if WARM and FB:
        sadd(52, 42, FAST); sadd(54, 44, FAST)
        for l in bl(52, 54): e(l)
    e("s_branch L_c_w")
    e("L_c_nwo:")
    if EW >= 0:
        e("s_cmp_lt_u32 s2, 208"); e("s_cbranch_scc0 L_c_w")
        for w in range(EW + 1):
            for i in range(4): w1_dma(i + 8 * w)
        for i in range(4): w2_dma(i)
    e("L_c_w:")
    e("v_lshrrev_b32 v14, 5, v0"); e("v_lshlrev_b32 v14, 5, v14"); e("v_mov_b32 v29, s28")
    e("s_barrier")
    e(f"ds_read_b128 v[20:23], v14 offset:{L_MAX}"); e(f"ds_read_b128 v[24:27], v14 offset:{L_MAX+16}")
    e("s_waitcnt lgkmcnt(0)")
    e("v_max3_f32 v20, v20, v21, v22"); e("v_max3_f32 v23, v23, v24, v25"); e("v_max3_f32 v20, v20, v26, v27"); e("v_max_f32 v20, v20, v23")
    e("v_bfi_b32 v56, s38, v20, v29")
    e("s_barrier")
    ts("B4")
    for w in range(8): e(f"ds_read_b128 {v4(64+4*w)}, v8 offset:{L_PV+1024*w}")
    e(f"ds_read_b128 v[20:23], v14 offset:{L_L}"); e(f"ds_read_b128 v[24:27], v14 offset:{L_L+16}")
    for st in (4, 8, 16):
        if st == 4: e("s_waitcnt lgkmcnt(2)" if not diag else "s_waitcnt lgkmcnt(0)")
        for w in range(0, 32, 2 * st):
            for k in (0, 2): e(f"v_pk_add_f32 {v2(64+w+k)}, {v2(64+w+k)}, {v2(64+w+st+k)}")
    for r in range(4): e(f"v_bfi_b32 v{60+r}, s38, v{64+r}, v29")
    if FB: pubB(62, 60, "")
    else: pubB(56, 60, "sc1")
    e("s_waitcnt lgkmcnt(0)")
    e("v_pk_add_f32 v[20:21], v[20:21], v[22:23]"); e("v_pk_add_f32 v[24:25], v[24:25], v[26:27]"); e("v_pk_add_f32 v[20:21], v[20:21], v[24:25]"); e("v_add_f32 v20, v20, v21")
    e("v_bfi_b32 v57, s38, v20, v29")
    if FB: pubBS(14, 56, "")
    else: pubBS(58, 56, "sc1")
    def slowB(): pubB(56, 60, "sc1"); pubBS(58, 56, "sc1")
    ts("Bpub")
    e("s_cmp_lt_u32 s2, 64"); e("s_cbranch_scc1 L_wo")
    if FB: slowB()
    if EW > 0: e(f"s_waitcnt vmcnt({4 + (4 if FB else 2)})")
    e("s_cmp_lt_u32 s2, 208"); e("s_cbranch_scc1 L_mlp")
    e("s_branch L_red")
    e("L_comp1:")
    def attention(nt, wo):
        sq, ke = seq(nt, wo); P = min(ke + D + PX, len(sq))
        for i in range(D, P):
            e(f"s_waitcnt vmcnt({D-1})"); sq[i]()
        e("v_lshrrev_b32 v14, 3, v2"); e("v_lshlrev_b32 v18, 8, v14"); e("v_lshl_add_u32 v18, v1, 6, v18"); e("v_and_b32 v19, 3, v0"); e("v_lshl_add_u32 v18, v19, 4, v18")
        e("v_lshlrev_b32 v14, 5, v14"); e("s_lshl_b32 s46, s3, 2"); e("s_sub_u32 s46, s46, 4"); e("v_add_u32 v19, s46, v14")
        e("s_waitcnt lgkmcnt(0)"); e("s_add_u32 s28, s28, 1"); e("v_mov_b32 v29, s28")
        e("s_barrier")
        e(f"ds_read_b128 v[20:23], v18 offset:{L_Q}")
        for i in range(P, len(sq)): sq[i]()
        e("s_waitcnt lgkmcnt(0)")
        D_, S, C = 124, 32, 42
        R = range(nt)
        for t in R:
            if ke - nt + t >= P - D: e(f"s_waitcnt vmcnt({2*nt-1-t})")
            e(f"v_mfma_f32_16x16x32_bf16 {v4(D_+4*t)}, {v4(KR+4*t)}, v[20:23], 0")
        for t in R: e(f"v_cndmask_b32 v{S+t}, v{D_+4*t}, v{D_+4*t+1}, s[32:33]")
        for t in R: e(f"v_cndmask_b32 v{S+t}, v{S+t}, v{D_+4*t+2}, s[34:35]")
        for t in R: e(f"v_cndmask_b32 v{S+t}, v{S+t}, v{D_+4*t+3}, s[36:37]")
        for t in R: e(f"v_add_f32_dpp v{S+t}, v{S+t}, v{S+t} quad_perm:[1,0,3,2] {DPP}")
        for t in R: e(f"v_add_f32_dpp v{S+t}, v{S+t}, v{S+t} quad_perm:[2,3,0,1] {DPP}")
        for rnd in range(2):
            for t in range(0, nt, 2): e(f"v_cvt_pk_bf16_f32 v{C+t//2}, v{S+t}, v{S+min(t+1,nt-1)}")
            for t in range(0, nt, 2):
                e(f"v_lshlrev_b32 v{S+t}, 16, v{C+t//2}")
                if t + 1 < nt: e(f"v_and_b32 v{S+t+1}, s39, v{C+t//2}")
            if rnd == 0:
                for t in R: e(f"v_mul_f32 v{S+t}, 0x3db504f3, v{S+t}")
        e(f"v_max3_f32 v{C}, v{S}, v{S+1}, v{S+2}")
        for t in range(3, nt, 2): e(f"v_max3_f32 v{C}, v{C}, v{S+t}, v{S+t+1}")
        rows_allreduce("v_max_f32", C, C + 1)
        e("s_mov_b64 exec, 0x101"); e(f"ds_write_b32 v19, v{C} offset:{L_MAX}"); e("s_mov_b64 exec, -1")
        e("s_waitcnt lgkmcnt(0)"); e("s_barrier")
        e(f"ds_read_b128 v[20:23], v14 offset:{L_MAX}"); e(f"ds_read_b128 v[24:27], v14 offset:{L_MAX+16}")
        e("s_waitcnt lgkmcnt(0)")
        e("v_max3_f32 v20, v20, v21, v22"); e("v_max3_f32 v23, v23, v24, v25"); e("v_max3_f32 v20, v20, v26, v27"); e("v_max_f32 v20, v20, v23")
        for t in R: e(f"v_sub_f32 v{S+t}, v{S+t}, v20")
        for t in R: e(f"v_mul_f32 v{S+t}, {LOG2E}, v{S+t}")
        for t in R: e(f"v_exp_f32 v{S+t}, v{S+t}")
        e(f"v_add_f32 v{C}, v{S}, v{S+1}")
        for t in range(2, nt): e(f"v_add_f32 v{C}, v{C}, v{S+t}")
        for t in R: e(f"v_cvt_pk_bf16_f32 v{S+t}, v{S+t}, v{S+t}")
        rows_allreduce("v_add_f32", C, C + 1)
        for t in R:
            for r in range(4): e(f"v_and_b32 v{D_+4*t+r}, v{4+r}, v{S+t}")
        e("s_mov_b64 exec, 0x101"); e(f"ds_write_b32 v19, v{C} offset:{L_L}"); e("s_mov_b64 exec, -1")
        e("s_lshl_b32 s46, s3, 10"); e("v_add_u32 v18, s46, v8")
        for t in R:
            e(f"s_waitcnt vmcnt({nt-1-t})")
            e(f"v_mfma_f32_16x16x32_bf16 v[20:23], {v4(D_+4*t)}, {v4(VR+4*t)}, {'0' if t == 0 else 'v[20:23]'}")
        e(f"ds_write_b128 v18, v[20:23] offset:{L_PV-1024}")
        e("s_waitcnt lgkmcnt(0)"); e("s_barrier")
    e("s_cmp_lt_u32 s2, 64"); e("s_cbranch_scc0 L_a_notwo")
    attention(5, True); e("s_branch L_wo")
    e("L_a_notwo:")
    attention(9, False)
    e("s_cmp_lt_u32 s2, 208"); e("s_cbranch_scc1 L_mlp")
    e("s_cmp_lt_u32 s3, 6"); e("s_cbranch_scc0 L_end")
    e("s_branch L_red")
    def tr_addr(base_s, off):
        e("v_lshrrev_b32 v14, 2, v2"); e("v_lshl_add_u32 v14, v1, 2, v14")
        e("v_bfe_u32 v18, v14, 1, 2"); e("v_lshlrev_b32 v18, 1, v18")
        e("v_lshlrev_b32 v14, 7, v14"); e(f"v_add_u32 v14, {base_s}, v14")
        e("v_and_b32 v19, 3, v0"); e("v_lshlrev_b32 v19, 1, v19"); e("v_xor_b32 v19, v19, v18")
        e("v_lshl_add_u32 v20, v19, 4, v14"); e("v_add_u32 v21, 8, v20"); e("v_add_u32 v22, 16, v20"); e("v_add_u32 v23, 24, v20")
    def pub_addr(nrec, wsoff, prod):
        e("s_lshl_b32 s46, s3, 2"); e("v_add_u32 v14, s46, v1")
        e(f"v_mul_u32_u24 v28, {nrec*64}, v14"); e("v_lshl_add_u32 v28, v2, 4, v28")
        e(f"s_lshl_b32 s46, {prod}, 6"); e(f"s_add_u32 s46, s46, {wsoff}"); sadd(40, 26, "s46")
    def publish(acc):
        for t, m in ((1, 32), (2, 34), (3, 36)):
            for r in range(4): e(f"v_cndmask_b32 v{acc+r}, v{acc+r}, v{acc+4*t+r}, s[{m}:{m+1}]")
        for r in range(4): e(f"v_bfi_b32 v{acc+r}, s38, v{acc+r}, v29")
        e("s_mov_b32 exec_lo, 0x000f000f"); e("s_mov_b32 exec_hi, 0x000f000f")
        e(f"global_store_dwordx4 v28, {v4(acc)}, s[40:41] {SF.replace('_',' ')}"); e("s_mov_b64 exec, -1")
    e("L_wo:")
    tr_addr("s47", 0); pub_addr(64, WS_C1, "s2")
    e("v_lshlrev_b32 v24, 4, v1")
    e("s_waitcnt vmcnt(0)" if not FB else "s_waitcnt vmcnt(2)")
    ts("Wgot")
    for t in range(4):
        for k in range(4): e(f"ds_read_b64_tr_b16 {v2(64+8*t+2*k)}, v{20+t} offset:{2048*k}")
    e("s_cmp_eq_u32 s96, 0"); e("s_cbranch_scc0 L_wo_b5")
    poll("B", bl(42, 44),
         list(range(96, 114)), 40, 8, ([42, 44], slowB) if FB else None)
    ts("Bgot")
    if diag: e("s_lshl_b32 s31, s30, 8"); e("s_or_b32 s66, s66, s31")
    e("v_and_b32 v112, s38, v112"); e("v_and_b32 v113, s38, v113")
    e(f"v_max_f32_dpp v40, v112, v112 quad_perm:[1,0,3,2] {DPP}")
    for r in range(96, 100): e(f"v_and_b32 v{r}, s38, v{r}")
    e(f"v_max_f32_dpp v40, v40, v40 quad_perm:[2,3,0,1] {DPP}")
    for r in range(100, 104): e(f"v_and_b32 v{r}, s38, v{r}")
    rows_allreduce("v_max_f32", 40, 41)
    e("v_sub_f32 v112, v112, v40")
    for r in range(104, 108): e(f"v_and_b32 v{r}, s38, v{r}")
    e(f"v_mul_f32 v112, {LOG2E}, v112")
    for r in range(108, 112): e(f"v_and_b32 v{r}, s38, v{r}")
    e("v_exp_f32 v112, v112")
    e("v_mul_f32 v40, v112, v113")
    for r in range(4): e(f"v_mul_f32_dpp v{96+r}, v112, v{96+r} quad_perm:[0,0,0,0] {DPP}")
    e(f"v_add_f32_dpp v40, v40, v40 quad_perm:[1,0,3,2] {DPP}")
    for r in range(4): e(f"v_fmac_f32_dpp v{96+r}, v112, v{100+r} quad_perm:[1,1,1,1] {DPP}")
    e(f"v_add_f32_dpp v40, v40, v40 quad_perm:[2,3,0,1] {DPP}")
    for r in range(4): e(f"v_fmac_f32_dpp v{96+r}, v112, v{104+r} quad_perm:[2,2,2,2] {DPP}")
    for r in range(4): e(f"v_fmac_f32_dpp v{96+r}, v112, v{108+r} quad_perm:[3,3,3,3] {DPP}")
    rows_allreduce("v_add_f32", 40, 41)
    e("v_rcp_f32 v40, v40")
    red4(96, ())
    e("v_mul_f32 v96, v96, v40"); e("v_cvt_pk_bf16_f32 v96, v96, v96")
    e(f"ds_write_b16 v164, v96 offset:{L_XF}")
    e("L_wo_b5:")
    e("s_waitcnt lgkmcnt(0)"); e("s_barrier")
    ts("B5")
    e(f"ds_read_b128 v[96:99], v24 offset:{L_XF}"); e(f"ds_read_b128 v[100:103], v24 offset:{L_XF+64}")
    for k in range(2):
        e(f"s_waitcnt lgkmcnt({1-k})" if not diag else "s_waitcnt lgkmcnt(0)")
        for t in range(4): e(f"v_mfma_f32_16x16x32_bf16 {v4(32+4*t)}, {v4(64+8*t+4*k)}, {v4(96+4*k)}, {'0' if k == 0 else v4(32+4*t)}")
    publish(32)
    ts("C1pub")
    e("s_cmp_eq_u32 s96, 0"); e("s_cbranch_scc0 L_end")
    if FB: late_slow("B", slowB)
    e("s_branch L_end")
    e("L_red:")
    e("s_sub_u32 s29, s2, 208"); e("s_lshr_b32 s29, s29, 3"); e("s_mul_i32 s29, s29, 6"); e("s_add_u32 s29, s29, s3")
    if not XR: e("s_and_b32 s46, s29, 7"); e("s_and_b32 s48, s2, 7"); e("s_cmp_eq_u32 s46, s48"); e("s_cbranch_scc0 L_end")
    e("s_lshl_b32 s49, s29, 5"); e("v_and_b32 v18, 3, v0"); e("v_lshl_add_u32 v16, v18, 2, v1"); e("v_lshl_add_u32 v16, v16, 1, s49")
    e("global_load_ushort v17, v16, s[4:5]")
    e("v_lshl_add_u32 v16, v18, 3, s49")
    e("s_lshl_b32 s46, s29, 12"); e(f"s_add_u32 s46, s46, {WS_C1+4096}"); sadd(42, 26, "s46")
    e("s_and_b32 s48, s2, 7"); e("s_lshl_b32 s46, s48, 6"); e("s_add_u32 s46, s46, s29"); e("s_lshl_b32 s46, s46, 6"); e(f"s_add_u32 s46, s46, {WS_C2}"); sadd(44, 26, "s46"); sadd(52, 44, FAST)
    e("v_lshlrev_b32 v14, 4, v18")
    if not XR:
        e("s_lshl_b32 s46, s29, 6"); e(f"s_add_u32 s46, s46, {WS_C2}"); sadd(44, 26, "s46")
        e("v_lshrrev_b32 v14, 2, v0"); e("v_lshlrev_b32 v14, 12, v14"); e("v_lshl_add_u32 v14, v18, 4, v14")
    e("v_subrev_u32 v20, 1, v29"); e("v_mov_b32 v21, v20"); e("v_mov_b32 v22, v20"); e("v_mov_b32 v23, v20")
    if XR: e("s_mov_b64 exec, 15"); e("global_store_dwordx4 v14, v[20:23], s[52:53]"); e("s_mov_b64 exec, -1")
    if PT: e("global_load_ushort v24, v16, s[20:21]")
    e("s_waitcnt vmcnt(0)"); e("v_lshlrev_b32 v17, 16, v17"); e("v_add_u32 v19, 1024, v8")
    def untr(a):
        e(f"v_mov_b32 v{a+1}, v{a}"); e(f"v_permlane16_swap_b32 v{a}, v{a+1}")
        e(f"v_mov_b32 v{a+2}, v{a}"); e(f"v_mov_b32 v{a+3}, v{a+1}"); e(f"v_permlane32_swap_b32 v{a}, v{a+2}"); e(f"v_permlane32_swap_b32 v{a+1}, v{a+3}")
    def gather_sum(name, n):
        lds_ = [f"global_load_dwordx4 {v4(96+4*i)}, v{8 if i < 8 else 19}, s[42:43] offset:{1024*min(i,7)-4096} {LF.replace('_',' ')}" for i in range(n)]
        if P2: poll(name + "0", ["s_mov_b64 exec, 0xff", lds_[0], "s_mov_b64 exec, -1"], list(range(96, 100)), 40, 8, None, "0xff")
        poll(name, lds_, list(range(96, 96 + 4 * n)), 40, 8)
        if name == "C1": ts("C1got")
        else: ts("B5")
        if diag: e(f"s_lshl_b32 s31, s30, {16 if name == 'C1' else 24}"); e("s_or_b32 s66, s66, s31")
        for r in range(4 * n): e(f"v_and_b32 v{96+r}, s38, v{96+r}")
        for a, b in ((0, 1), (2, 3), (0, 2)) if n == 4 else ((0, 1), (2, 3), (4, 5), (6, 7), (0, 8), (2, 4), (0, 6), (0, 2)):
            for k in (0, 2): e(f"v_pk_add_f32 {v2(96+4*a+k)}, {v2(96+4*a+k)}, {v2(96+4*b+k)}")
        red4(96, (8, 4))
        rbf(96, 96)
        e("v_add_f32 v17, v17, v96")
    gather_sum("C1", 4)
    e("v_cvt_pk_bf16_f32 v17, v17, v17"); e("v_bfi_b32 v20, s39, v17, v29")
    untr(20)
    if XR: e("s_mov_b64 exec, 15"); e("global_store_dwordx4 v14, v[20:23], s[52:53]"); e("global_store_dwordx4 v14, v[20:23], s[44:45] sc1"); e("s_mov_b64 exec, -1")
    else: e("s_mov_b32 exec_hi, 0"); e(f"global_store_dwordx4 v14, v[20:23], s[44:45] {SF.replace('_',' ')}"); e("s_mov_b64 exec, -1")
    e("s_and_b32 s46, s29, 7"); e("s_cmp_eq_u32 s46, s48"); e("s_cbranch_scc0 L_end")
    e("v_and_b32 v17, s39, v17")
    e(f"s_mul_i32 s46, s29, {144*64}"); e(f"s_add_u32 s46, s46, {WS_D+4096}"); sadd(42, 26, "s46")
    gather_sum("D", 9)
    e("v_mov_b32 v20, v17"); untr(20)
    e("v_cvt_pk_bf16_f32 v20, v20, v21"); e("v_cvt_pk_bf16_f32 v21, v22, v23")
    e("s_mov_b64 exec, 15")
    e("global_store_dwordx2 v16, v[20:21], s[20:21]")
    e("s_cmp_eq_u32 s29, 0"); e("s_cbranch_scc0 L_end")
    e("s_mov_b64 exec, 1"); e("v_mov_b32 v14, 0"); e("global_store_dword v14, v29, s[26:27] sc1")
    e("s_branch L_end")
    e("L_mlp:")
    if WB: e("s_barrier")
    if EW >= 0: e(f"s_cmp_le_u32 s3, {EW}"); e("s_cbranch_scc1 L_mlp_w2")
    for i in range(4): w1_dma(i)
    e("L_mlp_w2:")
    if EW >= 0: e("s_cmp_eq_u32 s96, 0"); e("s_cbranch_scc1 L_mlp_wd")
    for i in range(4): w2_dma(i)
    e("L_mlp_wd:")
    e("s_add_u32 s48, s47, 4096"); tr_addr("s48", 0)
    pub_addr(144, WS_D, "s29")
    e("v_lshrrev_b32 v14, 2, v2"); e("v_lshl_add_u32 v14, v1, 2, v14"); e("v_lshlrev_b32 v30, 6, v14"); e("v_and_b32 v14, 3, v0"); e("v_lshl_add_u32 v30, v14, 3, v30"); e("v_add_u32 v30, s47, v30")
    e("s_lshl_b32 s46, s3, 7"); e("v_lshlrev_b32 v31, 4, v1"); e("v_add_u32 v31, s46, v31")
    e("v_bfe_u32 v33, v0, 2, 1"); e("v_lshlrev_b32 v33, 2, v33"); e("v_add_u32 v33, v33, v1"); e("v_lshl_add_u32 v33, v33, 2, v14"); e("v_lshlrev_b32 v33, 2, v33")
    W1F, W2F = 64, 96
    e("s_waitcnt vmcnt(4)")
    for ks in range(2):
        for t in range(2):
            r = W1F + 4 * (2 * ks + t); o = ks * 2048 + 32 * t
            e(f"ds_read_b64_tr_b16 {v2(r)}, v30 offset:{o}"); e(f"ds_read_b64_tr_b16 {v2(r+2)}, v30 offset:{o+1024}")
    e("s_waitcnt vmcnt(0)")
    ts("Wgot")
    for t in range(4):
        for k in range(2): e(f"ds_read_b64_tr_b16 {v2(W2F+4*t+2*k)}, v{20+t} offset:{2048*k}")
    e("s_cmp_eq_u32 s96, 0"); e("s_cbranch_scc0 L_mlp_b5")
    e("s_and_b32 s46, s2, 7"); e("s_lshl_b32 s46, s46, 12"); e(f"s_add_u32 s46, s46, {WS_C2}"); sadd(42, 26, "s46")
    e("v_lshlrev_b32 v9, 2, v0")
    e("v_lshrrev_b32 v19, 3, v0"); e("v_lshlrev_b32 v18, 6, v19"); e("v_lshl_add_u32 v18, v14, 4, v18"); e("v_bfe_u32 v19, v0, 2, 1"); e("v_lshl_add_u32 v18, v19, 3, v18")
    e("v_bfe_u32 v34, v0, 2, 2"); e("v_lshlrev_b32 v19, 4, v34"); e("v_bfe_u32 v34, v0, 4, 1"); e("v_lshl_add_u32 v19, v34, 3, v19"); e("v_lshl_add_u32 v19, v14, 1, v19")
    e("v_lshrrev_b32 v34, 5, v0"); e("v_lshl_add_u32 v19, v34, 6, v19")
    X, T = 128, 140
    poll("C2", [f"global_load_dwordx4 {v4(X)}, v8, s[42:43] sc1", f"global_load_dwordx4 {v4(X+4)}, v8, s[42:43] offset:1024 sc1", f"global_load_dword v{X+8}, v9, s[42:43] offset:2048 sc1"],
         list(range(X, X + 9)), 40, 16, ([42], lambda: None) if XR else None)
    ts("C2got")
    if diag: e("s_lshl_b32 s31, s30, 8"); e("s_or_b32 s66, s66, s31")
    for i in range(9): e(f"v_and_b32 v{X+i}, s39, v{X+i}")
    layernorm(X, T, True)
    for i in range(4): e(f"v_cvt_pk_bf16_f32 v{T+i}, v{X+2*i}, v{X+2*i+1}")
    e(f"v_cvt_pk_bf16_f32 v{T+4}, v{X+8}, v{X+8}")
    e(f"ds_write_b64 v18, {v2(T)} offset:{L_HN}"); e(f"ds_write_b64 v18, {v2(T+2)} offset:{L_HN+512}"); e(f"ds_write_b16 v19, v{T+4} offset:{L_HN+1024}")
    e("L_mlp_b5:")
    e("s_waitcnt lgkmcnt(0)"); e("s_barrier")
    ts("B5")
    e(f"ds_read_b128 v[36:39], v31 offset:{L_HN}"); e(f"ds_read_b128 v[40:43], v31 offset:{L_HN+64}")
    for ks in range(2):
        e(f"s_waitcnt lgkmcnt({1-ks})" if not diag else "s_waitcnt lgkmcnt(0)")
        for t in range(2): e(f"v_mfma_f32_16x16x32_bf16 {v4(44+4*t)}, {v4(W1F+4*(2*ks+t))}, {v4(36+4*ks)}, {'0' if ks == 0 else v4(44+4*t)}")
    e("s_mov_b32 exec_lo, 0x00010001"); e("s_mov_b32 exec_hi, 0x00010001")
    for t in range(2): e(f"ds_write_b128 v31, {v4(44+4*t)} offset:{L_Y+64*t}")
    e("s_mov_b64 exec, -1")
    e("s_waitcnt lgkmcnt(0)"); e("s_barrier")
    for w in range(9): e(f"ds_read_b32 v{44+w}, v33 offset:{L_Y+128*w}")
    e("s_waitcnt lgkmcnt(0)")
    for a, b in ((44, 45), (46, 47), (48, 49), (50, 51), (44, 46), (48, 50), (44, 52), (44, 48)): e(f"v_add_f32 v{a}, v{a}, v{b}")
    e("v_max_f32 v44, 0, v44")
    e(f"v_mov_b32_dpp v45, v44 quad_perm:[1,0,3,2] {DPP}"); e("v_cvt_pk_bf16_f32 v44, v44, v45")
    for i in range(4): e(f"v_mov_b32_dpp v{36+i}, v44 row_newbcast:{2*i} {DPP}")
    for t in range(4): e(f"v_mfma_f32_16x16x32_bf16 {v4(44+4*t)}, {v4(W2F+4*t)}, v[36:39], 0")
    publish(44)
    ts("Dpub")
    e("L_end:")
    if diag:
        e("s_mov_b64 exec, -1")
        ts("end"); e("s_waitcnt lgkmcnt(0)")
        for i in range(16): e(f"v_writelane_b32 v1, s{64+2*i}, {i}")
        e("s_mul_i32 s46, s2, 9"); e("s_add_u32 s46, s46, s3"); e("s_lshl_b32 s46, s46, 6"); e(f"s_add_u32 s46, s46, {512<<20}"); sadd(40, 26, "s46")
        e("v_lshlrev_b32 v2, 2, v0"); e("s_mov_b64 exec, 0xffff"); e("global_store_dword v2, v1, s[40:41]")
        if dbgts is not None:
            e(f"s_cmp_eq_u32 s2, {dbgts}"); e("s_cbranch_scc0 L_exit"); e("s_cmp_eq_u32 s96, 0"); e("s_cbranch_scc0 L_exit")
            e("global_store_dword v2, v1, s[24:25]")
    e("L_exit:")
    e("s_endpgm")
    body = "\n".join(pad(L))
    hdr = open("cdna_kernels/" + KN[:-7] + ".s.ref").read().split("; Override launch")[0]
    hdr += f"; @launch grid=(256,1,1) block=(576,1,1) lds={LDS}\n"
    if diag: hdr += "; @ts " + " ".join(TS) + "\n"
    return hdr + f""".amdgcn_target "amdgcn-amd-amdhsa--gfx950"
.text
.globl {KN}
.p2align 8
.type {KN},@function
{KN}:
{body}
.section .rodata,"a"
.p2align 6
.amdhsa_kernel {KN}
  .amdhsa_next_free_vgpr 168
  .amdhsa_next_free_sgpr 102
  .amdhsa_accum_offset 168
  .amdhsa_group_segment_fixed_size 0
  .amdhsa_kernarg_size 88
  .amdhsa_user_sgpr_count 2
  .amdhsa_user_sgpr_kernarg_segment_ptr 1
  .amdhsa_system_sgpr_workgroup_id_x 1
.end_amdhsa_kernel
"""
if __name__ == "__main__":
    import ast
    if len(sys.argv) > 1:
        for a in sys.argv[1:]:
            n, _, kw = a.partition(":")
            kw = dict((k.split("=")[0], ast.literal_eval(k.split("=")[1])) for k in kw.split(",") if k)
            open(f"exp/{n}.s", "w").write(gen(**kw))
    else:
        open("k_diag.s", "w").write(gen(diag=True))
        open("k_dbg.s", "w").write(gen(diag=True, dbgts=0))
        open("cdna_kernels/" + KN[:-7] + ".s", "w").write(gen())
```

```python
import sys
from asmlib import pad
KN = "sequential_preLN__sliding_block_cached__dense_activation_relu__decode_kernel"
WS_A, WS_B, WS_BS, WS_C1, WS_C2, WS_D = 0x1000, 0x40000, 0x90000, 0x100000, 0x180000, 0x200000
L_XN, L_Q, L_MAX, L_L, L_Z, L_XF, L_HN, L_Y, L_H1, L_PV, L_W = 0, 2560, 3072, 3136, 3328, 3456, 4096, 6144, 8192, 12288, 20480
LDS = L_W + 9 * 8192
SPIN = 30000
FAST = 0x300000
LOG2E = "0x3fb8aa3b"
DPP = "row_mask:0xf bank_mask:0xf"
TS = ["start", "wq_iss", "x", "qpub", "qgot", "B2", "B4", "Bpub", "Bgot", "B5", "C1pub", "C1got", "Wgot", "C2got", "Dpub", "end"]

def isz(l):
    m = l.split()[0]
    if l.endswith(":") or m.startswith("@"): return 0
    if m.startswith(("ds_", "global_", "v_mfma", "v_pk_", "v_bitop3", "v_bfi", "v_bfe", "v_max3", "v_fma_", "v_lshl_add", "v_cvt_pk", "v_readlane", "v_cndmask", "s_load", "s_memreal")) or "_dpp" in m: return 8
    for t in l.replace(",", " ").split()[1:]:
        try:
            v = int(t, 0)
            if not (-16 <= v <= 64) and not m.startswith(("s_waitcnt", "s_nop")): return 8
        except ValueError: pass
    return 4
def walkers(L, padb):
    if not padb: return L
    npads = {}; out = []; cur = None; acc = 0
    for l in L:
        if l.startswith("@begin"): cur = l.split()[1]; npads[cur] = 0; acc = padb; continue
        if l.startswith("@end"): cur = None; continue
        if cur and acc >= padb and isz(l): out.append(f"@pad {cur} {npads[cur]}"); npads[cur] += 1; acc = 4
        out.append(l); acc += isz(l)
    waves = {l.split()[1]: [int(x) for x in l.split()[2].split(",")] for l in out if l.startswith("@walk")}
    res = []
    for l in out:
        if l.startswith("@walk"):
            r = l.split()[1]; n = npads[r]; ws = waves[r]; per = -(-n // len(ws))
            res.append("s_mov_b64 exec, 0")
            for i, w in enumerate(ws):
                if i * per < n:
                    if len(ws) > 1: res += [f"s_cmp_eq_u32 s3, {w}", f"s_cbranch_scc1 L_pad_{r}_{i*per}"]
                    else: res.append(f"s_branch L_pad_{r}_0")
            res += [f"L_ret_{r}:", "s_mov_b64 exec, -1"]
        elif l.startswith("@pad"):
            _, r, k = l.split(); k = int(k); n = npads[r]; per = -(-n // len(waves[r]))
            nxt = f"L_ret_{r}" if (k + 1) % per == 0 or k + 1 == n else f"L_pad_{r}_{k+1}"
            res += [f"L_pad_{r}_{k}:", f"s_cbranch_execz {nxt}"]
        else: res.append(l)
    return res
def gen(diag=False, dbgts=None, D=3, PX=2, PF=1, FA=1, FB=1, WB=1, P2=0, PT=1, SF='sc1', LF='sc1', XR=0, EW=0, WARM=1, PADB=0, W2L=0, B1=1, PP=2, LNX=0, PFW=0, PFF='nt', R0=320, WO=0):
    L = []; e = L.append
    def ts(name):
        if diag: i = TS.index(name); e(f"s_memrealtime s[{64+2*i}:{65+2*i}]")
    def mark(x):
        if PADB: e(x)
    def walk(name, waves):
        if PADB: e(f"@walk {name} {','.join(map(str, waves))}")
    def sadd(d, a, off):
        e(f"s_add_u32 s{d}, s{a}, {off}"); e(f"s_addc_u32 s{d+1}, s{a+1}, 0")
    def v4(r): return f"v[{r}:{r+3}]"
    def v2(r): return f"v[{r}:{r+1}]"
    def wave_sum2(a, b, sa, sb):
        for r in (8, 4, 2, 1):
            for x in (a, b):
                if x is not None: e(f"v_add_f32_dpp v{x}, v{x}, v{x} row_ror:{r} {DPP}")
        for x in (a, b):
            if x is not None: e(f"v_add_f32_dpp v{x}, v{x}, v{x} row_bcast:15 row_mask:0xa bank_mask:0xf")
        for x in (a, b):
            if x is not None: e(f"v_add_f32_dpp v{x}, v{x}, v{x} row_bcast:31 row_mask:0xc bank_mask:0xf")
        e(f"v_readlane_b32 s{sa}, v{a}, 63")
        if b is not None: e(f"v_readlane_b32 s{sb}, v{b}, 63")
    def rbf(d, s):
        e(f"v_cvt_pk_bf16_f32 v{d}, v{s}, v{s}"); e(f"v_and_b32 v{d}, s39, v{d}")
    def layernorm(X, T, onepass=False):
        e(f"v_add_f32 v{T}, v{X}, v{X+1}")
        if onepass: e(f"v_mul_f32 v{T+2}, v{X}, v{X}")
        for i in range(2, 9):
            e(f"v_add_f32 v{T}, v{T}, v{X+i}")
            if onepass: e(f"v_fmac_f32 v{T+2}, v{X+i-1}, v{X+i-1}")
        if onepass:
            e(f"v_fmac_f32 v{T+2}, v{X+8}, v{X+8}")
            wave_sum2(T, T + 2, 46, 31)
            e(f"v_mov_b32 v{T}, 0x3ae38e39"); e(f"v_mul_f32 v{T+1}, s46, v{T}"); e(f"v_mul_f32 v{T}, s31, v{T}")
            e(f"v_fma_f32 v{T}, -v{T+1}, v{T+1}, v{T}"); e(f"v_max_f32 v{T}, 0, v{T}")
            rbf(T + 1, T + 1)
            for i in range(9): e(f"v_sub_f32 v{X+i}, v{X+i}, v{T+1}")
        else:
            wave_sum2(T, None, 46, None)
            e(f"v_mov_b32 v{T+1}, 0x3ae38e39")
            e(f"v_mul_f32 v{T+1}, s46, v{T+1}")
            for i in range(9): e(f"v_sub_f32 v{T+2+i}, v{X+i}, v{T+1}")
            e(f"v_mul_f32 v{T}, v{T+2}, v{T+2}")
            for i in range(1, 9): e(f"v_fmac_f32 v{T}, v{T+2+i}, v{T+2+i}")
            rbf(T + 1, T + 1)
            wave_sum2(T, None, 46, None)
            for i in range(9): e(f"v_sub_f32 v{X+i}, v{X+i}, v{T+1}")
            e(f"v_mov_b32 v{T}, 0x3ae38e39"); e(f"v_mul_f32 v{T}, s46, v{T}")
        rbf(T, T)
        e(f"v_add_f32 v{T}, 0x3727c5ac, v{T}")
        rbf(T, T)
        e(f"v_sqrt_f32 v{T}, v{T}")
        for i in range(0, 8, 2):
            e(f"v_cvt_pk_bf16_f32 v{T+2}, v{X+i}, v{X+i+1}"); e(f"v_lshlrev_b32 v{X+i}, 16, v{T+2}"); e(f"v_and_b32 v{X+i+1}, s39, v{T+2}")
        rbf(X + 8, X + 8)
        rbf(T, T)
        e(f"v_rcp_f32 v{T+1}, v{T}")
        if onepass and not LNX:
            for i in range(9): e(f"v_mul_f32 v{X+i}, v{X+i}, v{T+1}")
            return
        for i in range(9): e(f"v_mul_f32 v{T+2+i}, v{X+i}, v{T+1}")
        for i in range(9): e(f"v_fma_f32 v{X+i}, -v{T+2+i}, v{T}, v{X+i}")
        for i in range(9): e(f"v_fma_f32 v{X+i}, v{X+i}, v{T+1}, v{T+2+i}")
    def poll(name, loads, check, vt, cmp, dual=None, mask=None):
        e("s_mov_b32 s30, 0")
        if dual:
            for i, b in enumerate(dual[0]): e(f"s_mov_b64 s[{52+2*i}:{53+2*i}], s[{b}:{b+1}]")
        e(f"L_poll_{name}:")
        if dual:
            e("s_and_b32 s31, s30, 31"); e("s_cmp_eq_u32 s31, 31"); e(f"s_cselect_b32 s31, 0, {FAST}")
            for i, b in enumerate(dual[0]): sadd(b, 52 + 2 * i, "s31")
            e("s_cmp_eq_u32 s30, 24"); e(f"s_cbranch_scc0 L_nsp_{name}"); dual[1](); e(f"L_nsp_{name}:")
        for l in loads: e(l)
        e("s_add_u32 s30, s30, 1"); e(f"s_cmp_gt_u32 s30, {SPIN}"); e("s_cbranch_scc1 L_end")
        e("s_waitcnt vmcnt(0)")
        acc = vt; first = True; c = list(check)
        while c:
            if first: e(f"v_bitop3_b32 v{acc}, v{c[0]}, v{c[1]}, s28 bitop3:0x7e"); c = c[2:]; first = False
            else: e(f"v_bitop3_b32 v{acc}, v{c[0]}, s28, v{acc} bitop3:0xbe"); c = c[1:]
        if cmp == 32: e(f"v_cmp_ne_u32 vcc, 0, v{acc}")
        elif cmp == 16: e(f"v_cmp_ne_u16 vcc, 0, v{acc}")
        else: e(f"v_and_b32 v{acc}, 0xff, v{acc}"); e(f"v_cmp_ne_u32 vcc, 0, v{acc}")
        if mask: e(f"s_and_b64 vcc, vcc, {mask}")
        e(f"s_cbranch_vccnz L_poll_{name}")
    def poll2(name, mk, n, Z, sets, bits, dual=None):
        sets = sets[:PP]; nl = len(mk(Z))
        e("s_mov_b32 s30, 0"); e(f"s_and_b32 s97, s28, {hex((1 << bits) - 1)}")
        if dual:
            for i, b in enumerate(dual[0]): e(f"s_mov_b64 s[{52+2*i}:{53+2*i}], s[{b}:{b+1}]"); sadd(b, 52 + 2 * i, FAST)
        for S_ in sets:
            for l in mk(S_): e(l)
        e(f"L_poll_{name}:")
        for k, S_ in enumerate(sets):
            e(f"s_waitcnt vmcnt({nl*(len(sets)-1)})")
            for i in range(n): e(f"v_xor_b32 v{Z+i}, s97, v{S_+i}")
            e(f"v_or3_b32 v40, v{Z}, v{Z+1}, v{Z+2}")
            for i in range(3, n, 2): e(f"v_or3_b32 v40, v40, v{Z+i}, v{Z+min(i+1,n-1)}")
            if bits == 16: e("v_cmp_ne_u16 vcc, 0, v40")
            else: e("v_and_b32 v40, 0xff, v40"); e("v_cmp_ne_u32 vcc, 0, v40")
            e(f"s_cbranch_vccz L_got_{name}")
            if k == 0:
                e("s_add_u32 s30, s30, 1"); e(f"s_cmp_gt_u32 s30, {SPIN}"); e("s_cbranch_scc1 L_end")
                if dual:
                    e("s_and_b32 s31, s30, 31"); e("s_cmp_eq_u32 s31, 31"); e(f"s_cselect_b32 s31, 0, {FAST}")
                    for i, b in enumerate(dual[0]): sadd(b, 52 + 2 * i, "s31")
                    e("s_cmp_eq_u32 s30, 24"); e(f"s_cbranch_scc0 L_nsp_{name}"); dual[1](); e("s_waitcnt vmcnt(0)"); e(f"L_nsp_{name}:")
            for l in mk(S_): e(l)
        e(f"s_branch L_poll_{name}")
        e(f"L_got_{name}:")
    def late_slow(name, f):
        e(f"s_cmp_le_u32 s30, {24 if name == 'A' else 23}"); e(f"s_cbranch_scc0 L_nsq_{name}"); f(); e(f"L_nsq_{name}:")
    def dma(voff, sb, lds):
        e(f"s_mov_b32 m0, {lds}" if isinstance(lds, int) else f"s_mov_b32 m0, {lds}")
        e(f"global_load_lds_dwordx4 v{voff}, s[{sb}:{sb+1}] nt")
    def wo_dma(i):
        e(f"s_add_u32 s49, s47, {i*1024}"); dma(10, 12, "s49"); sadd(12, 12, 8 * 1152)
    def w1_dma(i):
        e(f"s_add_u32 s49, s47, {i*1024}"); dma(11, 16, "s49"); sadd(16, 16, 16 * 9216)
    def w2_dma(i):
        e(f"s_add_u32 s49, s47, {4096+i*1024}"); dma(10, 18, "s49"); sadd(18, 18, 8 * 1152)
    def red4(a, rors):
        e(f"v_permlane16_swap_b32 v{a}, v{a+1}"); e(f"v_permlane16_swap_b32 v{a+2}, v{a+3}")
        e(f"v_add_f32 v{a}, v{a}, v{a+1}"); e(f"v_add_f32 v{a+2}, v{a+2}, v{a+3}")
        e(f"v_permlane32_swap_b32 v{a}, v{a+2}"); e(f"v_add_f32 v{a}, v{a}, v{a+2}")
        for r in rors: e(f"v_add_f32_dpp v{a}, v{a}, v{a} row_ror:{r} {DPP}")
    def rows_allreduce(op, x, t):
        e(f"v_mov_b32 v{t}, v{x}"); e(f"v_permlane16_swap_b32 v{t}, v{x}"); e(f"{op} v{x}, v{x}, v{t}")
        e(f"v_mov_b32 v{t}, v{x}"); e(f"v_permlane32_swap_b32 v{t}, v{x}"); e(f"{op} v{x}, v{x}, v{t}")

    def wvoff():
        e("v_lshrrev_b32 v14, 3, v0"); e("v_mul_u32_u24 v10, 1152, v14"); e("v_lshlrev_b32 v18, 1, v1"); e("v_xor_b32 v18, v18, v3"); e("v_lshl_add_u32 v10, v18, 4, v10")
        e("v_lshrrev_b32 v14, 2, v0"); e("v_mul_u32_u24 v11, 9216, v14"); e("v_and_b32 v14, 3, v0"); e("v_lshl_add_u32 v11, v14, 4, v11")
    def wbase():
        e("s_lshl_b32 s46, s22, 2"); e("s_add_u32 s46, s46, s23"); e(f"s_mul_i32 s46, s46, {64*1152}"); e("s_lshl_b32 s47, s3, 7"); e("s_add_u32 s46, s46, s47")
        sadd(12, 12, "s46")
        e("s_and_b32 s29, s2, 7"); e("s_mul_i32 s29, s29, 18"); e("s_lshr_b32 s46, s22, 3"); e("s_mul_i32 s46, s46, 9"); e("s_add_u32 s29, s29, s46"); e("s_add_u32 s29, s29, s23"); e("s_sub_u32 s29, s29, 4")
        e(f"s_mul_i32 s46, s29, {32*1152}"); e("s_add_u32 s46, s46, s47"); sadd(18, 18, "s46")
        e(f"s_mul_i32 s46, s3, {64*9216}"); e("s_lshl_b32 s47, s29, 6"); e("s_add_u32 s46, s46, s47"); sadd(16, 16, "s46")
        e("s_lshl_b32 s47, s3, 13"); e(f"s_add_u32 s47, s47, {L_W}")
    ts("start")
    if diag:
        for i in range(1, 16): e(f"s_mov_b32 s{64+2*i}, 0")
    e("s_cmp_ge_u32 s2, 256"); e("s_cbranch_scc1 L_exit")
    e("s_load_dwordx16 s[4:19], s[0:1], 0")
    e("s_load_dwordx2 s[20:21], s[0:1], 64")
    e("s_load_dwordx4 s[24:27], s[0:1], 72")
    e("v_lshrrev_b32 v1, 6, v0"); e("v_and_b32 v0, 63, v0"); e("v_readfirstlane_b32 s3, v1")
    e("s_and_b32 s22, s2, 15"); e("s_lshr_b32 s23, s2, 4")
    e("s_mov_b32 s38, 0xffffff00"); e("s_mov_b32 s39, 0xffff0000")
    e("v_lshrrev_b32 v1, 4, v0"); e("v_and_b32 v2, 15, v0"); e("v_and_b32 v3, 7, v0")
    e("s_cmp_eq_u32 s3, 0"); e("s_cbranch_scc0 L_comp0")
    e("s_mov_b32 s96, 0")
    e("s_setprio 3")
    e("v_lshlrev_b32 v8, 3, v0"); e("v_lshlrev_b32 v9, 1, v0")
    e("v_lshrrev_b32 v14, 3, v0"); e("v_lshlrev_b32 v15, 13, v14"); e("v_lshl_add_u32 v15, v3, 4, v15")
    e("s_lshr_b32 s46, s23, 2"); e(f"s_mul_i32 s47, s46, {144*8192}"); e("s_lshl_b32 s48, s22, 9"); e("s_add_u32 s47, s47, s48")
    e("s_and_b32 s48, s23, 3"); e("s_lshl_b32 s48, s48, 7"); e("s_add_u32 s47, s47, s48")
    e("s_waitcnt lgkmcnt(0)")
    e("global_load_dwordx2 v[20:21], v8, s[4:5]"); e("global_load_dwordx2 v[22:23], v8, s[4:5] offset:512"); e("global_load_ushort v28, v9, s[4:5] offset:1024")
    e("s_load_dword s28, s[26:27], 0")
    sadd(10, 10, "s47")
    WQ = 64
    for t in range(18):
        e(f"global_load_dwordx4 {v4(WQ+4*t)}, v15, s[10:11] nt")
        if t < 17: sadd(10, 10, 65536)
    if B1: e("s_barrier")
    e("s_branch L_common")
    e("L_comp0:")
    e("s_mov_b32 s96, 1")
    e("s_cmp_lt_u32 s23, 4"); e("s_cselect_b32 s46, 5, 9"); e(f"s_cselect_b32 s48, 0, {(640-4*288)*256 & 0xffffffff}")
    e("s_lshl_b32 s47, s23, 3"); e("s_add_u32 s47, s47, s3"); e("s_sub_u32 s47, s47, 1"); e("s_mul_i32 s46, s46, s47"); e("s_lshl_b32 s46, s46, 10"); e("s_add_u32 s46, s46, s48")
    e("s_lshl_b32 s47, s22, 24"); e("s_add_u32 s46, s46, s47"); e(f"s_add_u32 s46, s46, {61440*256 + 4096}")
    e("v_lshlrev_b32 v8, 4, v0"); e("v_add_u32 v17, 1024, v8")
    e("v_bfe_u32 v9, v0, 2, 2"); e("v_lshlrev_b32 v9, 8, v9"); e("v_lshl_add_u32 v9, v1, 6, v9"); e("v_and_b32 v14, 3, v0"); e("v_lshl_add_u32 v9, v14, 4, v9"); e("v_add_u32 v15, 1024, v9")
    wvoff()
    e("s_waitcnt lgkmcnt(0)")
    e("s_load_dword s28, s[26:27], 0")
    sadd(6, 6, "s46"); sadd(8, 8, "s46")
    KR, VR = 52, 88
    wbase()
    if PF:
        e("s_cmp_eq_u32 s3, 8"); e("s_cbranch_scc0 L_nopf")
        e("s_getpc_b64 s[50:51]")
        e("L_pc:")
        e("v_lshlrev_b32 v14, 7, v0"); e("v_add_u32 v18, 8192, v14"); e("v_min_u32 v18, L_exit-L_pc, v18"); e("v_min_u32 v14, L_exit-L_pc, v14")
        e("global_load_dword v30, v14, s[50:51]"); e("global_load_dword v31, v18, s[50:51]")
        e("L_nopf:")
    if B1: e("s_barrier")
    def ld(R, va, vb, sb, t):
        e(f"global_load_dwordx4 {v4(R+4*t)}, v{va if t < 8 else vb}, s[{sb}:{sb+1}] offset:{min(t,7)*1024-4096} nt")
    def seq(nt, wo):
        l = [(lambda i=i: wo_dma(i)) for i in range(8)] if wo else []
        l += [(lambda t=t: ld(KR, 9, 15, 6, t)) for t in range(nt)]
        ke = len(l)
        return l + [(lambda t=t: ld(VR, 8, 17, 8, t)) for t in range(nt)], ke
    e("s_cmp_lt_u32 s2, 64"); e("s_cbranch_scc0 L_first_kv")
    for i in range(D): wo_dma(i)
    e("s_branch L_common")
    e("L_first_kv:")
    for i in range(D): seq(9, False)[0][i]()
    e("L_common:")
    for r in range(4):
        e(f"v_mov_b32 v{4+r}, 0")
    e("v_and_b32 v14, 1, v0"); e("v_mov_b32 v18, 0xffff"); e("v_lshlrev_b32 v14, 4, v14"); e("v_lshlrev_b32 v18, v14, v18")
    for r in range(4):
        m = 0x0303030303030303 << (2 * r)
        e(f"s_mov_b32 exec_lo, {hex(m & 0xffffffff)}"); e(f"s_mov_b32 exec_hi, {hex(m & 0xffffffff)}"); e(f"v_mov_b32 v{4+r}, v18")
    e("s_mov_b64 exec, -1")
    e("s_mov_b32 s32, 0x22222222"); e("s_mov_b32 s33, s32"); e("s_mov_b32 s34, 0x44444444"); e("s_mov_b32 s35, s34"); e("s_mov_b32 s36, 0x88888888"); e("s_mov_b32 s37, s36")
    e("s_cmp_eq_u32 s96, 0"); e("s_cbranch_scc0 L_comp1")
    wvoff(); wbase()
    e("s_lshl_b32 s46, s22, 13"); e(f"s_add_u32 s46, s46, {WS_A}"); sadd(40, 26, "s46")
    e("s_lshl_b32 s46, s23, 9"); e("v_lshlrev_b32 v160, 6, v3"); e("v_lshl_add_u32 v160, v1, 5, v160"); e("v_add_u32 v160, s46, v160")
    e("s_lshl_b32 s46, s22, 14"); e("s_lshl_b32 s49, s23, 8"); e("s_add_u32 s46, s46, s49"); e(f"s_add_u32 s46, s46, {WS_B}"); sadd(56, 26, "s46")
    e("v_lshrrev_b32 v14, 5, v0"); e("v_lshrrev_b32 v161, 3, v2"); e("v_lshl_add_u32 v161, v14, 1, v161"); e("v_lshlrev_b32 v161, 12, v161")
    e("v_lshl_add_u32 v161, v3, 5, v161"); e("v_and_b32 v19, 1, v1"); e("v_lshl_add_u32 v161, v19, 4, v161")
    e("s_lshl_b32 s46, s22, 8"); e("s_lshl_b32 s49, s23, 3"); e("s_add_u32 s46, s46, s49"); e(f"s_add_u32 s46, s46, {WS_BS}"); sadd(58, 26, "s46")
    e("v_lshlrev_b32 v162, 7, v14")
    sadd(60, 40, FAST); sadd(62, 56, FAST); sadd(14, 58, FAST)
    def pubA(sb, r, fl):
        e("s_mov_b64 exec, 0x00ff00ff")
        e(f"global_store_dwordx4 v160, {v4(r)}, s[{sb}:{sb+1}] {fl}"); e(f"global_store_dwordx4 v160, {v4(r+4 if r != 52 else r)}, s[{sb}:{sb+1}] offset:16 {fl}")
        e("s_mov_b64 exec, -1")
    def pubB(sb, r, fl): e(f"global_store_dwordx4 v161, {v4(r)}, s[{sb}:{sb+1}] {fl}")
    def pubBS(sb, r, fl):
        e("s_mov_b32 exec_lo, 1"); e("s_mov_b32 exec_hi, 1"); e(f"global_store_dwordx2 v162, {v2(r)}, s[{sb}:{sb+1}] {fl}"); e("s_mov_b64 exec, -1")
    NPW = 2 * FA + 2 * FB
    e("s_waitcnt lgkmcnt(0)")
    for r in range(4): e(f"v_mov_b32 v{52+r}, s28")
    if FA: pubA(60, 52, "")
    if FB: pubB(62, 52, ""); pubBS(14, 52, "")
    e(f"s_waitcnt vmcnt({18+NPW})")
    ts("x")
    X, T = 30, 40
    for i, r in enumerate((20, 21, 22, 23)):
        e(f"v_lshlrev_b32 v{X+2*i}, 16, v{r}"); e(f"v_and_b32 v{X+2*i+1}, s39, v{r}")
    e(f"v_lshlrev_b32 v{X+8}, 16, v28")
    layernorm(X, T)
    for i in range(9): e(f"v_cvt_pk_bf16_f32 v{T+i}, v{X+i}, v{X+i}")
    e("v_lshlrev_b32 v14, 4, v0"); e("v_lshlrev_b32 v18, 2, v0")
    e(f"ds_write_b128 v14, {v4(T)} offset:{L_XN}"); e(f"ds_write_b128 v14, {v4(T+4)} offset:{L_XN+1024}"); e(f"ds_write_b32 v18, v{T+8} offset:{L_XN+2048}")
    e("s_lshr_b32 s46, s23, 2"); e(f"s_mul_i32 s46, s46, {144*4}"); e("v_lshrrev_b32 v14, 3, v0"); e("v_lshl_add_u32 v14, v14, 2, s46")
    for t in range(18): e(f"ds_read_b32 v{140+t}, v14 offset:{L_XN+32*t}")
    e("s_waitcnt lgkmcnt(0)")
    e("s_add_u32 s28, s28, 1")
    for t in range(18):
        A = 20 + 4 * (t % 2)
        for r in range(4): e(f"v_and_b32 v{A+r}, v{4+r}, v{140+t}")
        e(f"s_waitcnt vmcnt({17-t+NPW})")
        e(f"v_mfma_f32_16x16x32_bf16 v[32:35], {v4(A)}, {v4(WQ+4*t)}, {'0' if t == 0 else 'v[32:35]'}")
    e("v_add_u32 v14, 40, v0"); e("v_and_b32 v14, 63, v14"); e("v_lshlrev_b32 v14, 2, v14")
    for r in range(4): e(f"ds_bpermute_b32 v{36+r}, v14, v{32+r}")
    e("v_mov_b32 v41, s28"); e("v_mov_b32 v43, s28"); e("v_mov_b32 v45, s28"); e("v_mov_b32 v47, s28")
    e("s_waitcnt lgkmcnt(0)")
    for r in range(4): e(f"v_add_f32 v{40+2*r}, v{32+r}, v{36+r}")
    if FA: pubA(60, 40, "")
    else: pubA(40, 40, "sc1")
    ts("qpub")
    e("v_lshlrev_b32 v8, 4, v0"); sadd(42, 40, 4096)
    poll("A", [f"global_load_dwordx4 {v4(64+4*i)}, v8, s[42:43] offset:{i*1024-4096} sc1" for i in range(8)],
         [64 + 2 * i + 1 for i in range(16)], 20, 32, ([42], lambda: pubA(40, 40, "sc1")) if FA else None)
    ts("qgot")
    if diag: e("s_mov_b32 s66, s30")
    for h in range(2):
        for k in (0, 2):
            a = 64 + 4 * h + k
            e(f"v_add_f32 v{a}, v{a}, v{a+8}"); e(f"v_add_f32 v{a}, v{a}, v{a+16}"); e(f"v_add_f32 v{a}, v{a}, v{a+24}")
        e(f"v_cvt_pk_bf16_f32 v{20+h}, v{64+4*h}, v{66+4*h}")
    e("v_lshlrev_b32 v18, 2, v0")
    e(f"ds_write_b32 v18, v20 offset:{L_Q}"); e(f"ds_write_b32 v18, v21 offset:{L_Q+256}")
    e("s_waitcnt lgkmcnt(0)"); e("s_barrier")
    ts("B2")
    if FA: late_slow("A", lambda: pubA(40, 40, "sc1"))
    e("s_lshl_b32 s46, s22, 2"); e("s_add_u32 s46, s46, s23"); e("s_lshl_b32 s46, s46, 12"); e(f"s_add_u32 s46, s46, {WS_B}"); sadd(42, 26, "s46")
    e("s_lshl_b32 s46, s22, 8"); e("s_lshr_b32 s49, s23, 1"); e("s_lshl_b32 s49, s49, 7"); e("s_add_u32 s46, s46, s49"); e(f"s_add_u32 s46, s46, {WS_BS}"); sadd(44, 26, "s46")
    e("v_and_b32 v19, 3, v0"); e("v_lshl_add_u32 v163, v19, 2, v1"); e("v_lshlrev_b32 v163, 3, v163")
    e("v_lshlrev_b32 v164, 4, v19"); e("v_bfe_u32 v19, v0, 2, 1"); e("v_lshl_add_u32 v164, v19, 3, v164"); e("v_lshl_add_u32 v164, v1, 1, v164"); e("v_bfe_u32 v19, v0, 3, 1"); e("v_lshl_add_u32 v164, v19, 6, v164")
    e("s_cmp_lt_u32 s2, 64"); e("s_cbranch_scc0 L_c_nwo")
    for i in range(8): wo_dma(i)
    bl = lambda a, b, R: [f"global_load_dwordx2 {v2(R+16)}, v163, s[{b}:{b+1}] sc1"] + [f"global_load_dwordx4 {v4(R+4*i)}, v8, s[{a}:{a+1}] offset:{1024*i} sc1" for i in range(4)]
    if WARM and FB:
        sadd(52, 42, FAST); sadd(54, 44, FAST)
        for l in bl(52, 54, 116): e(l)
    e("s_branch L_c_w")
    e("L_c_nwo:")
    if EW >= 0:
        e("s_cmp_lt_u32 s2, 208"); e("s_cbranch_scc0 L_c_w")
        for w in range(EW + 1):
            for i in range(4): w1_dma(i + 8 * w)
        for i in range(4): w2_dma(i)
    e("L_c_w:")
    e("v_lshrrev_b32 v14, 5, v0"); e("v_lshlrev_b32 v14, 5, v14"); e("v_mov_b32 v29, s28")
    walk("CB", [0])
    e("s_barrier")
    mark("@begin CB")
    e(f"ds_read_b128 v[20:23], v14 offset:{L_MAX}"); e(f"ds_read_b128 v[24:27], v14 offset:{L_MAX+16}")
    e("s_waitcnt lgkmcnt(0)")
    e("v_max3_f32 v20, v20, v21, v22"); e("v_max3_f32 v23, v23, v24, v25"); e("v_max3_f32 v20, v20, v26, v27"); e("v_max_f32 v20, v20, v23")
    e("v_bfi_b32 v56, s38, v20, v29")
    e("s_barrier")
    ts("B4")
    for w in range(8): e(f"ds_read_b128 {v4(64+4*w)}, v8 offset:{L_PV+1024*w}")
    e(f"ds_read_b128 v[20:23], v14 offset:{L_L}"); e(f"ds_read_b128 v[24:27], v14 offset:{L_L+16}")
    for st in (4, 8, 16):
        if st == 4: e("s_waitcnt lgkmcnt(2)" if not diag else "s_waitcnt lgkmcnt(0)")
        for w in range(0, 32, 2 * st):
            for k in (0, 2): e(f"v_pk_add_f32 {v2(64+w+k)}, {v2(64+w+k)}, {v2(64+w+st+k)}")
    for r in range(4): e(f"v_bfi_b32 v{60+r}, s38, v{64+r}, v29")
    if FB: pubB(62, 60, "")
    else: pubB(56, 60, "sc1")
    e("s_waitcnt lgkmcnt(0)")
    e("v_pk_add_f32 v[20:21], v[20:21], v[22:23]"); e("v_pk_add_f32 v[24:25], v[24:25], v[26:27]"); e("v_pk_add_f32 v[20:21], v[20:21], v[24:25]"); e("v_add_f32 v20, v20, v21")
    e("v_bfi_b32 v57, s38, v20, v29")
    if FB: pubBS(14, 56, "")
    else: pubBS(58, 56, "sc1")
    def slowB(): pubB(56, 60, "sc1"); pubBS(58, 56, "sc1")
    mark("@end CB")
    ts("Bpub")
    e("s_cmp_lt_u32 s2, 64"); e("s_cbranch_scc1 L_wo")
    if FB: slowB()
    if EW > 0: e(f"s_waitcnt vmcnt({4 + (4 if FB else 2)})")
    e("s_barrier")
    e("s_cmp_lt_u32 s2, 208"); e("s_cbranch_scc1 L_mlp")
    e("s_branch L_red")
    e("L_comp1:")
    def attention(nt, wo):
        sq, ke = seq(nt, wo); P = min(ke + D + PX, len(sq))
        for i in range(D, P):
            e(f"s_waitcnt vmcnt({D-1})"); sq[i]()
        e("v_lshrrev_b32 v14, 3, v2"); e("v_lshlrev_b32 v18, 8, v14"); e("v_lshl_add_u32 v18, v1, 6, v18"); e("v_and_b32 v19, 3, v0"); e("v_lshl_add_u32 v18, v19, 4, v18")
        e("v_lshlrev_b32 v14, 5, v14"); e("s_lshl_b32 s46, s3, 2"); e("s_sub_u32 s46, s46, 4"); e("v_add_u32 v19, s46, v14")
        e("s_waitcnt lgkmcnt(0)"); e("s_add_u32 s28, s28, 1"); e("v_mov_b32 v29, s28")
        e("s_barrier")
        e(f"ds_read_b128 v[20:23], v18 offset:{L_Q}")
        for i in range(P, len(sq)): sq[i]()
        e("s_waitcnt lgkmcnt(0)")
        D_, S, C = 124, 32, 42
        R = range(nt)
        for t in R:
            if ke - nt + t >= P - D: e(f"s_waitcnt vmcnt({2*nt-1-t})")
            e(f"v_mfma_f32_16x16x32_bf16 {v4(D_+4*t)}, {v4(KR+4*t)}, v[20:23], 0")
        for t in R: e(f"v_cndmask_b32 v{S+t}, v{D_+4*t}, v{D_+4*t+1}, s[32:33]")
        for t in R: e(f"v_cndmask_b32 v{S+t}, v{S+t}, v{D_+4*t+2}, s[34:35]")
        for t in R: e(f"v_cndmask_b32 v{S+t}, v{S+t}, v{D_+4*t+3}, s[36:37]")
        for t in R: e(f"v_add_f32_dpp v{S+t}, v{S+t}, v{S+t} quad_perm:[1,0,3,2] {DPP}")
        for t in R: e(f"v_add_f32_dpp v{S+t}, v{S+t}, v{S+t} quad_perm:[2,3,0,1] {DPP}")
        for rnd in range(2):
            for t in range(0, nt, 2): e(f"v_cvt_pk_bf16_f32 v{C+t//2}, v{S+t}, v{S+min(t+1,nt-1)}")
            for t in range(0, nt, 2):
                e(f"v_lshlrev_b32 v{S+t}, 16, v{C+t//2}")
                if t + 1 < nt: e(f"v_and_b32 v{S+t+1}, s39, v{C+t//2}")
            if rnd == 0:
                for t in R: e(f"v_mul_f32 v{S+t}, 0x3db504f3, v{S+t}")
        e(f"v_max3_f32 v{C}, v{S}, v{S+1}, v{S+2}")
        for t in range(3, nt, 2): e(f"v_max3_f32 v{C}, v{C}, v{S+t}, v{S+t+1}")
        rows_allreduce("v_max_f32", C, C + 1)
        e("s_mov_b64 exec, 0x101"); e(f"ds_write_b32 v19, v{C} offset:{L_MAX}"); e("s_mov_b64 exec, -1")
        e("s_waitcnt lgkmcnt(0)"); e("s_barrier")
        e(f"ds_read_b128 v[20:23], v14 offset:{L_MAX}"); e(f"ds_read_b128 v[24:27], v14 offset:{L_MAX+16}")
        e("s_waitcnt lgkmcnt(0)")
        e("v_max3_f32 v20, v20, v21, v22"); e("v_max3_f32 v23, v23, v24, v25"); e("v_max3_f32 v20, v20, v26, v27"); e("v_max_f32 v20, v20, v23")
        for t in R: e(f"v_sub_f32 v{S+t}, v{S+t}, v20")
        for t in R: e(f"v_mul_f32 v{S+t}, {LOG2E}, v{S+t}")
        for t in R: e(f"v_exp_f32 v{S+t}, v{S+t}")
        e(f"v_add_f32 v{C}, v{S}, v{S+1}")
        for t in range(2, nt): e(f"v_add_f32 v{C}, v{C}, v{S+t}")
        for t in R: e(f"v_cvt_pk_bf16_f32 v{S+t}, v{S+t}, v{S+t}")
        rows_allreduce("v_add_f32", C, C + 1)
        for t in R:
            for r in range(4): e(f"v_and_b32 v{D_+4*t+r}, v{4+r}, v{S+t}")
        e("s_mov_b64 exec, 0x101"); e(f"ds_write_b32 v19, v{C} offset:{L_L}"); e("s_mov_b64 exec, -1")
        e("s_lshl_b32 s46, s3, 10"); e("v_add_u32 v18, s46, v8")
        for t in R:
            e(f"s_waitcnt vmcnt({nt-1-t})")
            e(f"v_mfma_f32_16x16x32_bf16 v[20:23], {v4(D_+4*t)}, {v4(VR+4*t)}, {'0' if t == 0 else 'v[20:23]'}")
        e(f"ds_write_b128 v18, v[20:23] offset:{L_PV-1024}")
        e("s_waitcnt lgkmcnt(0)"); e("s_barrier")
    e("s_cmp_lt_u32 s2, 64"); e("s_cbranch_scc0 L_a_notwo")
    attention(5, True); e("s_branch L_wo")
    e("L_a_notwo:")
    attention(9, False)
    e("s_barrier")
    e("s_cmp_lt_u32 s2, 208"); e("s_cbranch_scc1 L_mlp")
    if PFW & 1:
        e("s_cmp_eq_u32 s3, 8"); e("s_cbranch_scc0 L_npf1")
        per = (576 - R0) * 9 // 6; nk = -(-per // 64)
        e("s_load_dwordx2 s[16:17], s[0:1], 48")
        e("s_sub_u32 s46, s2, 208"); e("s_lshr_b32 s46, s46, 3"); e(f"s_mul_i32 s46, s46, {per}"); e("s_and_b32 s48, s2, 7"); e("s_mul_i32 s48, s48, 1152"); e(f"s_add_u32 s48, s48, {R0*9216}")
        e("s_waitcnt lgkmcnt(0)"); sadd(16, 16, "s48")
        for k in range(nk):
            e(f"v_add_u32 v14, {64*k}, v0"); e(f"v_min_u32 v14, {per-1}, v14"); e("v_add_u32 v14, s46, v14")
            e("v_mul_u32_u24 v18, 7282, v14"); e("v_lshrrev_b32 v18, 16, v18"); e("v_mul_u32_u24 v18, 63, v18"); e("v_add_u32 v14, v14, v18"); e("v_lshlrev_b32 v14, 7, v14")
            e(f"global_load_dword v{32+k}, v14, s[16:17] {PFF}")
        e("s_waitcnt vmcnt(0)")
        e("L_npf1:")
    e("s_cmp_lt_u32 s3, 6"); e("s_cbranch_scc0 L_end")
    e("s_branch L_red")
    def tr_addr(base_s, off):
        e("v_lshrrev_b32 v14, 2, v2"); e("v_lshl_add_u32 v14, v1, 2, v14")
        e("v_bfe_u32 v18, v14, 1, 2"); e("v_lshlrev_b32 v18, 1, v18")
        e("v_lshlrev_b32 v14, 7, v14"); e(f"v_add_u32 v14, {base_s}, v14")
        e("v_and_b32 v19, 3, v0"); e("v_lshlrev_b32 v19, 1, v19"); e("v_xor_b32 v19, v19, v18")
        e("v_lshl_add_u32 v20, v19, 4, v14"); e("v_add_u32 v21, 8, v20"); e("v_add_u32 v22, 16, v20"); e("v_add_u32 v23, 24, v20")
    def pub_addr(nrec, wsoff, prod):
        e("s_lshl_b32 s46, s3, 2"); e("v_add_u32 v14, s46, v1")
        e(f"v_mul_u32_u24 v28, {nrec*64}, v14"); e("v_lshl_add_u32 v28, v2, 4, v28")
        e(f"s_lshl_b32 s46, {prod}, 6"); e(f"s_add_u32 s46, s46, {wsoff}"); sadd(40, 26, "s46")
    def publish(acc):
        for t, m in ((1, 32), (2, 34), (3, 36)):
            for r in range(4): e(f"v_cndmask_b32 v{acc+r}, v{acc+r}, v{acc+4*t+r}, s[{m}:{m+1}]")
        for r in range(4): e(f"v_bfi_b32 v{acc+r}, s38, v{acc+r}, v29")
        e("s_mov_b32 exec_lo, 0x000f000f"); e("s_mov_b32 exec_hi, 0x000f000f")
        e(f"global_store_dwordx4 v28, {v4(acc)}, s[40:41] {SF.replace('_',' ')}"); e("s_mov_b64 exec, -1")
    e("L_wo:")
    walk("WO", range(1, 9))
    tr_addr("s47", 0); pub_addr(64, WS_C1, "s2")
    e("v_lshlrev_b32 v24, 4, v1")
    e("s_waitcnt vmcnt(0)" if not FB else "s_waitcnt vmcnt(2)")
    ts("Wgot")
    for t in range(4):
        for k in range(4): e(f"ds_read_b64_tr_b16 {v2(64+8*t+2*k)}, v{20+t} offset:{2048*k}")
    e("s_cmp_eq_u32 s96, 0"); e("s_cbranch_scc0 L_wo_b5")
    poll2("B", lambda R: bl(42, 44, R), 18, 96, [116, 136], 8, ([42, 44], slowB) if FB else None)
    ts("Bgot")
    mark("@begin WO")
    if diag: e("s_lshl_b32 s31, s30, 8"); e("s_or_b32 s66, s66, s31")
    e(f"v_max_f32_dpp v40, v112, v112 quad_perm:[1,0,3,2] {DPP}")
    e(f"v_max_f32_dpp v40, v40, v40 quad_perm:[2,3,0,1] {DPP}")
    rows_allreduce("v_max_f32", 40, 41)
    e("v_sub_f32 v112, v112, v40")
    e(f"v_mul_f32 v112, {LOG2E}, v112")
    e("v_exp_f32 v112, v112")
    e("v_mul_f32 v40, v112, v113")
    for r in range(4): e(f"v_mul_f32_dpp v{96+r}, v112, v{96+r} quad_perm:[0,0,0,0] {DPP}")
    e(f"v_add_f32_dpp v40, v40, v40 quad_perm:[1,0,3,2] {DPP}")
    for r in range(4): e(f"v_fmac_f32_dpp v{96+r}, v112, v{100+r} quad_perm:[1,1,1,1] {DPP}")
    e(f"v_add_f32_dpp v40, v40, v40 quad_perm:[2,3,0,1] {DPP}")
    for r in range(4): e(f"v_fmac_f32_dpp v{96+r}, v112, v{104+r} quad_perm:[2,2,2,2] {DPP}")
    for r in range(4): e(f"v_fmac_f32_dpp v{96+r}, v112, v{108+r} quad_perm:[3,3,3,3] {DPP}")
    rows_allreduce("v_add_f32", 40, 41)
    e("v_rcp_f32 v40, v40")
    red4(96, ())
    e("v_mul_f32 v96, v96, v40"); e("v_cvt_pk_bf16_f32 v96, v96, v96")
    e(f"ds_write_b16 v164, v96 offset:{L_XF}")
    e("L_wo_b5:")
    e("s_waitcnt lgkmcnt(0)"); e("s_barrier")
    ts("B5")
    e(f"ds_read_b128 v[96:99], v24 offset:{L_XF}"); e(f"ds_read_b128 v[100:103], v24 offset:{L_XF+64}")
    for k in range(2):
        e(f"s_waitcnt lgkmcnt({1-k})" if not diag else "s_waitcnt lgkmcnt(0)")
        for t in range(4): e(f"v_mfma_f32_16x16x32_bf16 {v4(32+4*t)}, {v4(64+8*t+4*k)}, {v4(96+4*k)}, {'0' if k == 0 else v4(32+4*t)}")
    publish(32)
    mark("@end WO")
    ts("C1pub")
    if PFW & 2:
        e("s_barrier"); e("s_cmp_eq_u32 s3, 8"); e("s_cbranch_scc0 L_npf2")
        e("s_load_dwordx2 s[18:19], s[0:1], 56")
        e("s_lshr_b32 s46, s2, 3"); e("s_mul_i32 s46, s46, 72"); e("s_and_b32 s48, s2, 7"); e("s_mul_i32 s48, s48, 576"); e("s_add_u32 s46, s46, s48"); e("s_mul_i32 s46, s46, 1152"); e("s_add_u32 s46, s46, 640")
        e("s_waitcnt lgkmcnt(0)"); sadd(18, 18, "s46")
        for k in range(5):
            e(f"v_add_u32 v14, {64*k}, v0"); e("v_min_u32 v14, 287, v14"); e("v_lshrrev_b32 v18, 2, v14"); e("v_mul_u32_u24 v18, 1152, v18"); e("v_and_b32 v14, 3, v14"); e("v_lshl_add_u32 v14, v14, 7, v18")
            e(f"global_load_dword v{48+k}, v14, s[18:19] {PFF}")
        e("s_waitcnt vmcnt(0)")
        e("L_npf2:")
    e("s_cmp_eq_u32 s96, 0"); e("s_cbranch_scc0 L_end")
    if FB: late_slow("B", slowB)
    e("s_branch L_end")
    e("L_red:")
    e("s_sub_u32 s29, s2, 208"); e("s_lshr_b32 s29, s29, 3"); e("s_mul_i32 s29, s29, 6"); e("s_add_u32 s29, s29, s3")
    if not XR: e("s_and_b32 s46, s29, 7"); e("s_and_b32 s48, s2, 7"); e("s_cmp_eq_u32 s46, s48"); e("s_cbranch_scc0 L_end")
    e("s_lshl_b32 s49, s29, 5"); e("v_and_b32 v18, 3, v0"); e("v_lshl_add_u32 v16, v18, 2, v1"); e("v_lshl_add_u32 v16, v16, 1, s49")
    e("global_load_ushort v17, v16, s[4:5]")
    e("v_lshl_add_u32 v16, v18, 3, s49")
    e("s_lshl_b32 s46, s29, 12"); e(f"s_add_u32 s46, s46, {WS_C1+4096}"); sadd(42, 26, "s46")
    e("s_and_b32 s48, s2, 7"); e("s_lshl_b32 s46, s48, 6"); e("s_add_u32 s46, s46, s29"); e("s_lshl_b32 s46, s46, 6"); e(f"s_add_u32 s46, s46, {WS_C2}"); sadd(44, 26, "s46"); sadd(52, 44, FAST)
    e("v_lshlrev_b32 v14, 4, v18")
    if not XR:
        e("s_lshl_b32 s46, s29, 6"); e(f"s_add_u32 s46, s46, {WS_C2}"); sadd(44, 26, "s46")
        e("v_lshrrev_b32 v14, 2, v0"); e("v_lshlrev_b32 v14, 12, v14"); e("v_lshl_add_u32 v14, v18, 4, v14")
    e("v_subrev_u32 v20, 1, v29"); e("v_mov_b32 v21, v20"); e("v_mov_b32 v22, v20"); e("v_mov_b32 v23, v20")
    if XR: e("s_mov_b64 exec, 15"); e("global_store_dwordx4 v14, v[20:23], s[52:53]"); e("s_mov_b64 exec, -1")
    if PT: e("global_load_ushort v24, v16, s[20:21]")
    e("s_waitcnt vmcnt(0)"); e("v_lshlrev_b32 v17, 16, v17"); e("v_add_u32 v19, 1024, v8")
    def untr(a):
        e(f"v_mov_b32 v{a+1}, v{a}"); e(f"v_permlane16_swap_b32 v{a}, v{a+1}")
        e(f"v_mov_b32 v{a+2}, v{a}"); e(f"v_mov_b32 v{a+3}, v{a+1}"); e(f"v_permlane32_swap_b32 v{a}, v{a+2}"); e(f"v_permlane32_swap_b32 v{a+1}, v{a+3}")
    def gather_sum(name, n):
        mk = lambda R: [f"global_load_dwordx4 {v4(R+4*i)}, v{8 if i < 8 else 19}, s[42:43] offset:{1024*min(i,7)-4096} {LF.replace('_',' ')}" for i in range(n)]
        poll2(name, mk, 4 * n, 96, [132, 44] if n == 9 else [80, 112], 8)
        if name == "C1": ts("C1got")
        else: ts("B5")
        if diag: e(f"s_lshl_b32 s31, s30, {16 if name == 'C1' else 24}"); e("s_or_b32 s66, s66, s31")
        for a, b in ((0, 1), (2, 3), (0, 2)) if n == 4 else ((0, 1), (2, 3), (4, 5), (6, 7), (0, 8), (2, 4), (0, 6), (0, 2)):
            for k in (0, 2): e(f"v_pk_add_f32 {v2(96+4*a+k)}, {v2(96+4*a+k)}, {v2(96+4*b+k)}")
        red4(96, (8, 4))
        rbf(96, 96)
        e("v_add_f32 v17, v17, v96")
    mark("@begin RD")
    gather_sum("C1", 4)
    e("v_cvt_pk_bf16_f32 v17, v17, v17"); e("v_bfi_b32 v20, s39, v17, v29")
    untr(20)
    if XR: e("s_mov_b64 exec, 15"); e("global_store_dwordx4 v14, v[20:23], s[52:53]"); e("global_store_dwordx4 v14, v[20:23], s[44:45] sc1"); e("s_mov_b64 exec, -1")
    else: e("s_mov_b32 exec_hi, 0"); e(f"global_store_dwordx4 v14, v[20:23], s[44:45] {SF.replace('_',' ')}"); e("s_mov_b64 exec, -1")
    e("s_and_b32 s46, s29, 7"); e("s_cmp_eq_u32 s46, s48"); e("s_cbranch_scc0 L_end")
    e("v_and_b32 v17, s39, v17")
    e(f"s_mul_i32 s46, s29, {144*64}"); e(f"s_add_u32 s46, s46, {WS_D+4096}"); sadd(42, 26, "s46")
    gather_sum("D", 9)
    e("v_mov_b32 v20, v17"); untr(20)
    e("v_cvt_pk_bf16_f32 v20, v20, v21"); e("v_cvt_pk_bf16_f32 v21, v22, v23")
    e("s_mov_b64 exec, 15")
    e("global_store_dwordx2 v16, v[20:21], s[20:21]")
    mark("@end RD")
    e("s_cmp_eq_u32 s29, 0"); e("s_cbranch_scc0 L_end")
    e("s_mov_b64 exec, 1"); e("v_mov_b32 v14, 0"); e("global_store_dword v14, v29, s[26:27] sc1")
    e("s_branch L_end")
    e("L_mlp:")
    if EW >= 0: e(f"s_cmp_le_u32 s3, {EW}"); e("s_cbranch_scc1 L_mlp_w2")
    for i in range(4): w1_dma(i)
    e("L_mlp_w2:")
    if WO: e("s_barrier")
    if EW >= 0: e("s_cmp_eq_u32 s96, 0"); e("s_cbranch_scc1 L_mlp_wd")
    for i in range(4): w2_dma(i)
    e("L_mlp_wd:")
    walk("ML", range(1, 9))
    e("s_add_u32 s48, s47, 4096"); tr_addr("s48", 0)
    pub_addr(144, WS_D, "s29")
    e("v_lshrrev_b32 v14, 2, v2"); e("v_lshl_add_u32 v14, v1, 2, v14"); e("v_lshlrev_b32 v30, 6, v14"); e("v_and_b32 v14, 3, v0"); e("v_lshl_add_u32 v30, v14, 3, v30"); e("v_add_u32 v30, s47, v30")
    e("s_lshl_b32 s46, s3, 7"); e("v_lshlrev_b32 v31, 4, v1"); e("v_add_u32 v31, s46, v31")
    e("v_bfe_u32 v33, v0, 2, 1"); e("v_lshlrev_b32 v33, 2, v33"); e("v_add_u32 v33, v33, v1"); e("v_lshl_add_u32 v33, v33, 2, v14"); e("v_lshlrev_b32 v33, 2, v33")
    W1F, W2F = 64, 96
    e("s_waitcnt vmcnt(4)")
    for ks in range(2):
        for t in range(2):
            r = W1F + 4 * (2 * ks + t); o = ks * 2048 + 32 * t
            e(f"ds_read_b64_tr_b16 {v2(r)}, v30 offset:{o}"); e(f"ds_read_b64_tr_b16 {v2(r+2)}, v30 offset:{o+1024}")
    def w2f():
        e("s_waitcnt vmcnt(0)")
        ts("Wgot")
        for t in range(4):
            for k in range(2): e(f"ds_read_b64_tr_b16 {v2(W2F+4*t+2*k)}, v{20+t} offset:{2048*k}")
    if not W2L: w2f()
    e("s_cmp_eq_u32 s96, 0"); e("s_cbranch_scc0 L_mlp_b5")
    e("s_and_b32 s46, s2, 7"); e("s_lshl_b32 s46, s46, 12"); e(f"s_add_u32 s46, s46, {WS_C2}"); sadd(42, 26, "s46")
    e("v_lshlrev_b32 v9, 2, v0")
    e("v_lshrrev_b32 v19, 3, v0"); e("v_lshlrev_b32 v18, 6, v19"); e("v_lshl_add_u32 v18, v14, 4, v18"); e("v_bfe_u32 v19, v0, 2, 1"); e("v_lshl_add_u32 v18, v19, 3, v18")
    e("v_bfe_u32 v34, v0, 2, 2"); e("v_lshlrev_b32 v19, 4, v34"); e("v_bfe_u32 v34, v0, 4, 1"); e("v_lshl_add_u32 v19, v34, 3, v19"); e("v_lshl_add_u32 v19, v14, 1, v19")
    e("v_lshrrev_b32 v34, 5, v0"); e("v_lshl_add_u32 v19, v34, 6, v19")
    X, T = 128, 140
    poll2("C2", lambda R: [f"global_load_dwordx4 {v4(R)}, v8, s[42:43] sc1", f"global_load_dwordx4 {v4(R+4)}, v8, s[42:43] offset:1024 sc1", f"global_load_dword v{R+8}, v9, s[42:43] offset:2048 sc1"],
          9, X, [112, 80], 16, ([42], lambda: None) if XR else None)
    ts("C2got")
    mark("@begin ML")
    if diag: e("s_lshl_b32 s31, s30, 8"); e("s_or_b32 s66, s66, s31")
    layernorm(X, T, True)
    for i in range(4): e(f"v_cvt_pk_bf16_f32 v{T+i}, v{X+2*i}, v{X+2*i+1}")
    e(f"v_cvt_pk_bf16_f32 v{T+4}, v{X+8}, v{X+8}")
    e(f"ds_write_b64 v18, {v2(T)} offset:{L_HN}"); e(f"ds_write_b64 v18, {v2(T+2)} offset:{L_HN+512}"); e(f"ds_write_b16 v19, v{T+4} offset:{L_HN+1024}")
    e("L_mlp_b5:")
    e("s_waitcnt lgkmcnt(0)"); e("s_barrier")
    ts("B5")
    e(f"ds_read_b128 v[36:39], v31 offset:{L_HN}"); e(f"ds_read_b128 v[40:43], v31 offset:{L_HN+64}")
    for ks in range(2):
        e(f"s_waitcnt lgkmcnt({1-ks})" if not diag else "s_waitcnt lgkmcnt(0)")
        for t in range(2): e(f"v_mfma_f32_16x16x32_bf16 {v4(44+4*t)}, {v4(W1F+4*(2*ks+t))}, {v4(36+4*ks)}, {'0' if ks == 0 else v4(44+4*t)}")
    e("s_mov_b32 exec_lo, 0x00010001"); e("s_mov_b32 exec_hi, 0x00010001")
    for t in range(2): e(f"ds_write_b128 v31, {v4(44+4*t)} offset:{L_Y+64*t}")
    e("s_mov_b64 exec, -1")
    e("s_waitcnt lgkmcnt(0)"); e("s_barrier")
    if W2L: w2f()
    for w in range(9): e(f"ds_read_b32 v{44+w}, v33 offset:{L_Y+128*w}")
    e("s_waitcnt lgkmcnt(0)")
    for a, b in ((44, 45), (46, 47), (48, 49), (50, 51), (44, 46), (48, 50), (44, 52), (44, 48)): e(f"v_add_f32 v{a}, v{a}, v{b}")
    e("v_max_f32 v44, 0, v44")
    e(f"v_mov_b32_dpp v45, v44 quad_perm:[1,0,3,2] {DPP}"); e("v_cvt_pk_bf16_f32 v44, v44, v45")
    for i in range(4): e(f"v_mov_b32_dpp v{36+i}, v44 row_newbcast:{2*i} {DPP}")
    for t in range(4): e(f"v_mfma_f32_16x16x32_bf16 {v4(44+4*t)}, {v4(W2F+4*t)}, v[36:39], 0")
    publish(44)
    mark("@end ML")
    ts("Dpub")
    e("L_end:")
    if diag:
        e("s_mov_b64 exec, -1")
        ts("end"); e("s_waitcnt lgkmcnt(0)")
        for i in range(16): e(f"v_writelane_b32 v1, s{64+2*i}, {i}")
        e("s_mul_i32 s46, s2, 9"); e("s_add_u32 s46, s46, s3"); e("s_lshl_b32 s46, s46, 6"); e(f"s_add_u32 s46, s46, {512<<20}"); sadd(40, 26, "s46")
        e("v_lshlrev_b32 v2, 2, v0"); e("s_mov_b64 exec, 0xffff"); e("global_store_dword v2, v1, s[40:41]")
        if dbgts is not None:
            e(f"s_cmp_eq_u32 s2, {dbgts}"); e("s_cbranch_scc0 L_exit"); e("s_cmp_eq_u32 s96, 0"); e("s_cbranch_scc0 L_exit")
            e("global_store_dword v2, v1, s[24:25]")
    e("L_exit:")
    e("s_endpgm")
    body = "\n".join(walkers(pad([l for l in L]), PADB))
    hdr = open("cdna_kernels/" + KN[:-7] + ".s.ref").read().split("; Override launch")[0]
    hdr += f"; @launch grid=(256,1,1) block=(576,1,1) lds={LDS}\n"
    if diag: hdr += "; @ts " + " ".join(TS) + "\n"
    return hdr + f""".amdgcn_target "amdgcn-amd-amdhsa--gfx950"
.text
.globl {KN}
.p2align 8
.type {KN},@function
{KN}:
{body}
.section .rodata,"a"
.p2align 6
.amdhsa_kernel {KN}
  .amdhsa_next_free_vgpr 168
  .amdhsa_next_free_sgpr 102
  .amdhsa_accum_offset 168
  .amdhsa_group_segment_fixed_size 0
  .amdhsa_kernarg_size 88
  .amdhsa_user_sgpr_count 2
  .amdhsa_user_sgpr_kernarg_segment_ptr 1
  .amdhsa_system_sgpr_workgroup_id_x 1
.end_amdhsa_kernel
"""
if __name__ == "__main__":
    import ast
    if len(sys.argv) > 1:
        for a in sys.argv[1:]:
            n, _, kw = a.partition(":")
            kw = dict((k.split("=")[0], ast.literal_eval(k.split("=")[1])) for k in kw.split(",") if k)
            open(f"exp/{n}.s", "w").write(gen(**kw))
    else:
        open("k_diag.s", "w").write(gen(diag=True))
        open("k_dbg.s", "w").write(gen(diag=True, dbgts=0))
        open("cdna_kernels/" + KN[:-7] + ".s", "w").write(gen())
```

```python
import sys
from asmlib import pad
KN = "sequential_preLN__sliding_block_cached__dense_activation_relu__decode_kernel"
WS_A, WS_B, WS_BS, WS_C1, WS_C2, WS_D = 0x1000, 0x40000, 0x90000, 0x100000, 0x180000, 0x200000
L_XN, L_Q, L_MAX, L_L, L_Z, L_XF, L_HN, L_Y, L_H1, L_PV, L_W = 0, 2560, 3072, 3136, 3328, 3456, 4096, 6144, 8192, 12288, 20480
LDS = L_W + 9 * 8192
SPIN = 30000
FAST = 0x300000
LOG2E = "0x3fb8aa3b"
DPP = "row_mask:0xf bank_mask:0xf"
TS = ["start", "wq_iss", "x", "qpub", "qgot", "B2", "B4", "Bpub", "Bgot", "B5", "C1pub", "C1got", "Wgot", "C2got", "Dpub", "end"]

def isz(l):
    m = l.split()[0]
    if l.endswith(":") or m.startswith("@"): return 0
    if m.startswith(("ds_", "global_", "v_mfma", "v_pk_", "v_bitop3", "v_bfi", "v_bfe", "v_max3", "v_fma_", "v_lshl_add", "v_cvt_pk", "v_readlane", "v_cndmask", "s_load", "s_memreal")) or "_dpp" in m: return 8
    for t in l.replace(",", " ").split()[1:]:
        try:
            v = int(t, 0)
            if not (-16 <= v <= 64) and not m.startswith(("s_waitcnt", "s_nop")): return 8
        except ValueError: pass
    return 4
def walkers(L, padb):
    if not padb: return L
    npads = {}; out = []; cur = None; acc = 0
    for l in L:
        if l.startswith("@begin"): cur = l.split()[1]; npads[cur] = 0; acc = padb; continue
        if l.startswith("@end"): cur = None; continue
        if cur and acc >= padb and isz(l): out.append(f"@pad {cur} {npads[cur]}"); npads[cur] += 1; acc = 4
        out.append(l); acc += isz(l)
    waves = {l.split()[1]: [int(x) for x in l.split()[2].split(",")] for l in out if l.startswith("@walk")}
    res = []
    for l in out:
        if l.startswith("@walk"):
            r = l.split()[1]; n = npads[r]; ws = waves[r]; per = -(-n // len(ws))
            res.append("s_mov_b64 exec, 0")
            for i, w in enumerate(ws):
                if i * per < n:
                    if len(ws) > 1: res += [f"s_cmp_eq_u32 s3, {w}", f"s_cbranch_scc1 L_pad_{r}_{i*per}"]
                    else: res.append(f"s_branch L_pad_{r}_0")
            res += [f"L_ret_{r}:", "s_mov_b64 exec, -1"]
        elif l.startswith("@pad"):
            _, r, k = l.split(); k = int(k); n = npads[r]; per = -(-n // len(waves[r]))
            nxt = f"L_ret_{r}" if (k + 1) % per == 0 or k + 1 == n else f"L_pad_{r}_{k+1}"
            res += [f"L_pad_{r}_{k}:", f"s_cbranch_execz {nxt}"]
        else: res.append(l)
    return res
def gen(diag=False, dbgts=None, D=3, PX=2, PF=1, FA=1, FB=1, WB=1, P2=0, PT=1, SF='sc1', LF='sc1', XR=0, EW=0, WARM=1, PADB=0, W2L=0, B1=1, PP=2, LNX=0, PFW=0, PFF='nt', R0=320, WO=0, LT=0):
    L = []; e = L.append
    def ts(name):
        if diag: i = TS.index(name); e(f"s_memrealtime s[{64+2*i}:{65+2*i}]")
    def mark(x):
        if PADB: e(x)
    def walk(name, waves):
        if PADB: e(f"@walk {name} {','.join(map(str, waves))}")
    def sadd(d, a, off):
        e(f"s_add_u32 s{d}, s{a}, {off}"); e(f"s_addc_u32 s{d+1}, s{a+1}, 0")
    def v4(r): return f"v[{r}:{r+3}]"
    def v2(r): return f"v[{r}:{r+1}]"
    def wave_sum2(a, b, sa, sb):
        for r in (8, 4, 2, 1):
            for x in (a, b):
                if x is not None: e(f"v_add_f32_dpp v{x}, v{x}, v{x} row_ror:{r} {DPP}")
        for x in (a, b):
            if x is not None: e(f"v_add_f32_dpp v{x}, v{x}, v{x} row_bcast:15 row_mask:0xa bank_mask:0xf")
        for x in (a, b):
            if x is not None: e(f"v_add_f32_dpp v{x}, v{x}, v{x} row_bcast:31 row_mask:0xc bank_mask:0xf")
        e(f"v_readlane_b32 s{sa}, v{a}, 63")
        if b is not None: e(f"v_readlane_b32 s{sb}, v{b}, 63")
    def rbf(d, s):
        e(f"v_cvt_pk_bf16_f32 v{d}, v{s}, v{s}"); e(f"v_and_b32 v{d}, s39, v{d}")
    def layernorm(X, T, onepass=False):
        e(f"v_add_f32 v{T}, v{X}, v{X+1}")
        if onepass: e(f"v_mul_f32 v{T+2}, v{X}, v{X}")
        for i in range(2, 9):
            e(f"v_add_f32 v{T}, v{T}, v{X+i}")
            if onepass: e(f"v_fmac_f32 v{T+2}, v{X+i-1}, v{X+i-1}")
        if onepass:
            e(f"v_fmac_f32 v{T+2}, v{X+8}, v{X+8}")
            wave_sum2(T, T + 2, 46, 31)
            e(f"v_mov_b32 v{T}, 0x3ae38e39"); e(f"v_mul_f32 v{T+1}, s46, v{T}"); e(f"v_mul_f32 v{T}, s31, v{T}")
            e(f"v_fma_f32 v{T}, -v{T+1}, v{T+1}, v{T}"); e(f"v_max_f32 v{T}, 0, v{T}")
            rbf(T + 1, T + 1)
            for i in range(9): e(f"v_sub_f32 v{X+i}, v{X+i}, v{T+1}")
        else:
            wave_sum2(T, None, 46, None)
            e(f"v_mov_b32 v{T+1}, 0x3ae38e39")
            e(f"v_mul_f32 v{T+1}, s46, v{T+1}")
            for i in range(9): e(f"v_sub_f32 v{T+2+i}, v{X+i}, v{T+1}")
            e(f"v_mul_f32 v{T}, v{T+2}, v{T+2}")
            for i in range(1, 9): e(f"v_fmac_f32 v{T}, v{T+2+i}, v{T+2+i}")
            rbf(T + 1, T + 1)
            wave_sum2(T, None, 46, None)
            for i in range(9): e(f"v_sub_f32 v{X+i}, v{X+i}, v{T+1}")
            e(f"v_mov_b32 v{T}, 0x3ae38e39"); e(f"v_mul_f32 v{T}, s46, v{T}")
        rbf(T, T)
        e(f"v_add_f32 v{T}, 0x3727c5ac, v{T}")
        rbf(T, T)
        e(f"v_sqrt_f32 v{T}, v{T}")
        for i in range(0, 8, 2):
            e(f"v_cvt_pk_bf16_f32 v{T+2}, v{X+i}, v{X+i+1}"); e(f"v_lshlrev_b32 v{X+i}, 16, v{T+2}"); e(f"v_and_b32 v{X+i+1}, s39, v{T+2}")
        rbf(X + 8, X + 8)
        rbf(T, T)
        e(f"v_rcp_f32 v{T+1}, v{T}")
        if onepass and not LNX:
            for i in range(9): e(f"v_mul_f32 v{X+i}, v{X+i}, v{T+1}")
            return
        for i in range(9): e(f"v_mul_f32 v{T+2+i}, v{X+i}, v{T+1}")
        for i in range(9): e(f"v_fma_f32 v{X+i}, -v{T+2+i}, v{T}, v{X+i}")
        for i in range(9): e(f"v_fma_f32 v{X+i}, v{X+i}, v{T+1}, v{T+2+i}")
    def poll(name, loads, check, vt, cmp, dual=None, mask=None):
        e("s_mov_b32 s30, 0")
        if dual:
            for i, b in enumerate(dual[0]): e(f"s_mov_b64 s[{52+2*i}:{53+2*i}], s[{b}:{b+1}]")
        e(f"L_poll_{name}:")
        if dual:
            e("s_and_b32 s31, s30, 31"); e("s_cmp_eq_u32 s31, 31"); e(f"s_cselect_b32 s31, 0, {FAST}")
            for i, b in enumerate(dual[0]): sadd(b, 52 + 2 * i, "s31")
            e("s_cmp_eq_u32 s30, 24"); e(f"s_cbranch_scc0 L_nsp_{name}"); dual[1](); e(f"L_nsp_{name}:")
        for l in loads: e(l)
        e("s_add_u32 s30, s30, 1"); e(f"s_cmp_gt_u32 s30, {SPIN}"); e("s_cbranch_scc1 L_end")
        e("s_waitcnt vmcnt(0)")
        acc = vt; first = True; c = list(check)
        while c:
            if first: e(f"v_bitop3_b32 v{acc}, v{c[0]}, v{c[1]}, s28 bitop3:0x7e"); c = c[2:]; first = False
            else: e(f"v_bitop3_b32 v{acc}, v{c[0]}, s28, v{acc} bitop3:0xbe"); c = c[1:]
        if cmp == 32: e(f"v_cmp_ne_u32 vcc, 0, v{acc}")
        elif cmp == 16: e(f"v_cmp_ne_u16 vcc, 0, v{acc}")
        else: e(f"v_and_b32 v{acc}, 0xff, v{acc}"); e(f"v_cmp_ne_u32 vcc, 0, v{acc}")
        if mask: e(f"s_and_b64 vcc, vcc, {mask}")
        e(f"s_cbranch_vccnz L_poll_{name}")
    def poll2(name, mk, n, Z, sets, bits, dual=None):
        sets = sets[:PP]; nl = len(mk(Z))
        e("s_mov_b32 s30, 0"); e(f"s_and_b32 s97, s28, {hex((1 << bits) - 1)}")
        if dual:
            for i, b in enumerate(dual[0]): e(f"s_mov_b64 s[{52+2*i}:{53+2*i}], s[{b}:{b+1}]"); sadd(b, 52 + 2 * i, FAST)
        for S_ in sets:
            for l in mk(S_): e(l)
        e(f"L_poll_{name}:")
        for k, S_ in enumerate(sets):
            e(f"s_waitcnt vmcnt({nl*(len(sets)-1)})")
            for i in range(n): e(f"v_xor_b32 v{Z+i}, s97, v{S_+i}")
            e(f"v_or3_b32 v40, v{Z}, v{Z+1}, v{Z+2}")
            for i in range(3, n, 2): e(f"v_or3_b32 v40, v40, v{Z+i}, v{Z+min(i+1,n-1)}")
            if bits == 16: e("v_cmp_ne_u16 vcc, 0, v40")
            else: e("v_and_b32 v40, 0xff, v40"); e("v_cmp_ne_u32 vcc, 0, v40")
            e(f"s_cbranch_vccz L_got_{name}")
            if k == 0:
                e("s_add_u32 s30, s30, 1"); e(f"s_cmp_gt_u32 s30, {SPIN}"); e("s_cbranch_scc1 L_end")
                if dual:
                    e("s_and_b32 s31, s30, 31"); e("s_cmp_eq_u32 s31, 31"); e(f"s_cselect_b32 s31, 0, {FAST}")
                    for i, b in enumerate(dual[0]): sadd(b, 52 + 2 * i, "s31")
                    e("s_cmp_eq_u32 s30, 24"); e(f"s_cbranch_scc0 L_nsp_{name}"); dual[1](); e("s_waitcnt vmcnt(0)"); e(f"L_nsp_{name}:")
            for l in mk(S_): e(l)
        e(f"s_branch L_poll_{name}")
        e(f"L_got_{name}:")
    def late_slow(name, f):
        e(f"s_cmp_le_u32 s30, {24 if name == 'A' else 23}"); e(f"s_cbranch_scc0 L_nsq_{name}"); f(); e(f"L_nsq_{name}:")
    def dma(voff, sb, lds):
        e(f"s_mov_b32 m0, {lds}" if isinstance(lds, int) else f"s_mov_b32 m0, {lds}")
        e(f"global_load_lds_dwordx4 v{voff}, s[{sb}:{sb+1}] nt")
    def wo_dma(i):
        e(f"s_add_u32 s49, s47, {i*1024}"); dma(10, 12, "s49"); sadd(12, 12, 8 * 1152)
    def w1_dma(i):
        e(f"s_add_u32 s49, s47, {i*1024}"); dma(11, 16, "s49"); sadd(16, 16, 16 * 9216)
    def w2_dma(i):
        e(f"s_add_u32 s49, s47, {4096+i*1024}"); dma(10, 18, "s49"); sadd(18, 18, 8 * 1152)
    def red4(a, rors):
        e(f"v_permlane16_swap_b32 v{a}, v{a+1}"); e(f"v_permlane16_swap_b32 v{a+2}, v{a+3}")
        e(f"v_add_f32 v{a}, v{a}, v{a+1}"); e(f"v_add_f32 v{a+2}, v{a+2}, v{a+3}")
        e(f"v_permlane32_swap_b32 v{a}, v{a+2}"); e(f"v_add_f32 v{a}, v{a}, v{a+2}")
        for r in rors: e(f"v_add_f32_dpp v{a}, v{a}, v{a} row_ror:{r} {DPP}")
    def rows_allreduce(op, x, t):
        e(f"v_mov_b32 v{t}, v{x}"); e(f"v_permlane16_swap_b32 v{t}, v{x}"); e(f"{op} v{x}, v{x}, v{t}")
        e(f"v_mov_b32 v{t}, v{x}"); e(f"v_permlane32_swap_b32 v{t}, v{x}"); e(f"{op} v{x}, v{x}, v{t}")

    def wvoff():
        e("v_lshrrev_b32 v14, 3, v0"); e("v_mul_u32_u24 v10, 1152, v14"); e("v_lshlrev_b32 v18, 1, v1"); e("v_xor_b32 v18, v18, v3"); e("v_lshl_add_u32 v10, v18, 4, v10")
        e("v_lshrrev_b32 v14, 2, v0"); e("v_mul_u32_u24 v11, 9216, v14"); e("v_and_b32 v14, 3, v0"); e("v_lshl_add_u32 v11, v14, 4, v11")
    def wbase():
        e("s_lshl_b32 s46, s22, 2"); e("s_add_u32 s46, s46, s23"); e(f"s_mul_i32 s46, s46, {64*1152}"); e("s_lshl_b32 s47, s3, 7"); e("s_add_u32 s46, s46, s47")
        sadd(12, 12, "s46")
        e("s_and_b32 s29, s2, 7"); e("s_mul_i32 s29, s29, 18"); e("s_lshr_b32 s46, s22, 3"); e("s_mul_i32 s46, s46, 9"); e("s_add_u32 s29, s29, s46"); e("s_add_u32 s29, s29, s23"); e("s_sub_u32 s29, s29, 4")
        e(f"s_mul_i32 s46, s29, {32*1152}"); e("s_add_u32 s46, s46, s47"); sadd(18, 18, "s46")
        e(f"s_mul_i32 s46, s3, {64*9216}"); e("s_lshl_b32 s47, s29, 6"); e("s_add_u32 s46, s46, s47"); sadd(16, 16, "s46")
        e("s_lshl_b32 s47, s3, 13"); e(f"s_add_u32 s47, s47, {L_W}")
    ts("start")
    if diag:
        for i in range(1, 16): e(f"s_mov_b32 s{64+2*i}, 0")
    e("s_cmp_ge_u32 s2, 256"); e("s_cbranch_scc1 L_exit")
    e("s_load_dwordx16 s[4:19], s[0:1], 0")
    e("s_load_dwordx2 s[20:21], s[0:1], 64")
    e("s_load_dwordx4 s[24:27], s[0:1], 72")
    e("v_lshrrev_b32 v1, 6, v0"); e("v_and_b32 v0, 63, v0"); e("v_readfirstlane_b32 s3, v1")
    e("s_and_b32 s22, s2, 15"); e("s_lshr_b32 s23, s2, 4")
    e("s_mov_b32 s38, 0xffffff00"); e("s_mov_b32 s39, 0xffff0000")
    e("v_lshrrev_b32 v1, 4, v0"); e("v_and_b32 v2, 15, v0"); e("v_and_b32 v3, 7, v0")
    e("s_cmp_eq_u32 s3, 0"); e("s_cbranch_scc0 L_comp0")
    e("s_mov_b32 s96, 0")
    e("s_setprio 3")
    e("v_lshlrev_b32 v8, 3, v0"); e("v_lshlrev_b32 v9, 1, v0")
    e("v_lshrrev_b32 v14, 3, v0"); e("v_lshlrev_b32 v15, 13, v14"); e("v_lshl_add_u32 v15, v3, 4, v15")
    e("s_lshr_b32 s46, s23, 2"); e(f"s_mul_i32 s47, s46, {144*8192}"); e("s_lshl_b32 s48, s22, 9"); e("s_add_u32 s47, s47, s48")
    e("s_and_b32 s48, s23, 3"); e("s_lshl_b32 s48, s48, 7"); e("s_add_u32 s47, s47, s48")
    e("s_waitcnt lgkmcnt(0)")
    e("global_load_dwordx2 v[20:21], v8, s[4:5]"); e("global_load_dwordx2 v[22:23], v8, s[4:5] offset:512"); e("global_load_ushort v28, v9, s[4:5] offset:1024")
    e("s_load_dword s28, s[26:27], 0")
    sadd(10, 10, "s47")
    WQ = 64
    for t in range(18):
        e(f"global_load_dwordx4 {v4(WQ+4*t)}, v15, s[10:11] nt")
        if t < 17: sadd(10, 10, 65536)
    if B1: e("s_barrier")
    e("s_branch L_common")
    e("L_comp0:")
    e("s_mov_b32 s96, 1")
    e("s_cmp_lt_u32 s23, 4"); e("s_cselect_b32 s46, 5, 9"); e(f"s_cselect_b32 s48, 0, {(640-4*288)*256 & 0xffffffff}")
    e("s_lshl_b32 s47, s23, 3"); e("s_add_u32 s47, s47, s3"); e("s_sub_u32 s47, s47, 1"); e("s_mul_i32 s46, s46, s47"); e("s_lshl_b32 s46, s46, 10"); e("s_add_u32 s46, s46, s48")
    e("s_lshl_b32 s47, s22, 24"); e("s_add_u32 s46, s46, s47"); e(f"s_add_u32 s46, s46, {61440*256 + 4096}")
    e("v_lshlrev_b32 v8, 4, v0"); e("v_add_u32 v17, 1024, v8")
    e("v_bfe_u32 v9, v0, 2, 2"); e("v_lshlrev_b32 v9, 8, v9"); e("v_lshl_add_u32 v9, v1, 6, v9"); e("v_and_b32 v14, 3, v0"); e("v_lshl_add_u32 v9, v14, 4, v9"); e("v_add_u32 v15, 1024, v9")
    wvoff()
    e("s_waitcnt lgkmcnt(0)")
    e("s_load_dword s28, s[26:27], 0")
    sadd(6, 6, "s46"); sadd(8, 8, "s46")
    KR, VR = 52, 88
    wbase()
    if PF:
        e("s_cmp_eq_u32 s3, 8"); e("s_cbranch_scc0 L_nopf")
        e("s_getpc_b64 s[50:51]")
        e("L_pc:")
        e("v_lshlrev_b32 v14, 7, v0"); e("v_add_u32 v18, 8192, v14"); e("v_min_u32 v18, L_exit-L_pc, v18"); e("v_min_u32 v14, L_exit-L_pc, v14")
        e("global_load_dword v30, v14, s[50:51]"); e("global_load_dword v31, v18, s[50:51]")
        e("L_nopf:")
    if B1: e("s_barrier")
    def ld(R, va, vb, sb, t):
        e(f"global_load_dwordx4 {v4(R+4*t)}, v{va if t < 8 else vb}, s[{sb}:{sb+1}] offset:{min(t,7)*1024-4096} nt")
    def seq(nt, wo):
        l = [(lambda i=i: wo_dma(i)) for i in range(8)] if wo else []
        l += [(lambda t=t: ld(KR, 9, 15, 6, t)) for t in range(nt)]
        ke = len(l)
        return l + [(lambda t=t: ld(VR, 8, 17, 8, t)) for t in range(nt)], ke
    e("s_cmp_lt_u32 s2, 64"); e("s_cbranch_scc0 L_first_kv")
    for i in range(D): wo_dma(i)
    e("s_branch L_common")
    e("L_first_kv:")
    for i in range(D): seq(9, False)[0][i]()
    e("L_common:")
    for r in range(4):
        e(f"v_mov_b32 v{4+r}, 0")
    e("v_and_b32 v14, 1, v0"); e("v_mov_b32 v18, 0xffff"); e("v_lshlrev_b32 v14, 4, v14"); e("v_lshlrev_b32 v18, v14, v18")
    for r in range(4):
        m = 0x0303030303030303 << (2 * r)
        e(f"s_mov_b32 exec_lo, {hex(m & 0xffffffff)}"); e(f"s_mov_b32 exec_hi, {hex(m & 0xffffffff)}"); e(f"v_mov_b32 v{4+r}, v18")
    e("s_mov_b64 exec, -1")
    e("s_mov_b32 s32, 0x22222222"); e("s_mov_b32 s33, s32"); e("s_mov_b32 s34, 0x44444444"); e("s_mov_b32 s35, s34"); e("s_mov_b32 s36, 0x88888888"); e("s_mov_b32 s37, s36")
    e("s_cmp_eq_u32 s96, 0"); e("s_cbranch_scc0 L_comp1")
    wvoff(); wbase()
    e("s_lshl_b32 s46, s22, 13"); e(f"s_add_u32 s46, s46, {WS_A}"); sadd(40, 26, "s46")
    e("s_lshl_b32 s46, s23, 9"); e("v_lshlrev_b32 v160, 6, v3"); e("v_lshl_add_u32 v160, v1, 5, v160"); e("v_add_u32 v160, s46, v160")
    e("s_lshl_b32 s46, s22, 14"); e("s_lshl_b32 s49, s23, 8"); e("s_add_u32 s46, s46, s49"); e(f"s_add_u32 s46, s46, {WS_B}"); sadd(56, 26, "s46")
    e("v_lshrrev_b32 v14, 5, v0"); e("v_lshrrev_b32 v161, 3, v2"); e("v_lshl_add_u32 v161, v14, 1, v161"); e("v_lshlrev_b32 v161, 12, v161")
    e("v_lshl_add_u32 v161, v3, 5, v161"); e("v_and_b32 v19, 1, v1"); e("v_lshl_add_u32 v161, v19, 4, v161")
    e("s_lshl_b32 s46, s22, 8"); e("s_lshl_b32 s49, s23, 3"); e("s_add_u32 s46, s46, s49"); e(f"s_add_u32 s46, s46, {WS_BS}"); sadd(58, 26, "s46")
    e("v_lshlrev_b32 v162, 7, v14")
    sadd(60, 40, FAST); sadd(62, 56, FAST); sadd(14, 58, FAST)
    def pubA(sb, r, fl):
        e("s_mov_b64 exec, 0x00ff00ff")
        e(f"global_store_dwordx4 v160, {v4(r)}, s[{sb}:{sb+1}] {fl}"); e(f"global_store_dwordx4 v160, {v4(r+4 if r != 52 else r)}, s[{sb}:{sb+1}] offset:16 {fl}")
        e("s_mov_b64 exec, -1")
    def pubB(sb, r, fl): e(f"global_store_dwordx4 v161, {v4(r)}, s[{sb}:{sb+1}] {fl}")
    def pubBS(sb, r, fl):
        e("s_mov_b32 exec_lo, 1"); e("s_mov_b32 exec_hi, 1"); e(f"global_store_dwordx2 v162, {v2(r)}, s[{sb}:{sb+1}] {fl}"); e("s_mov_b64 exec, -1")
    NPW = 2 * FA + 2 * FB
    e("s_waitcnt lgkmcnt(0)")
    for r in range(4): e(f"v_mov_b32 v{52+r}, s28")
    if FA: pubA(60, 52, "")
    if FB: pubB(62, 52, ""); pubBS(14, 52, "")
    e(f"s_waitcnt vmcnt({18+NPW})")
    ts("x")
    X, T = 30, 40
    for i, r in enumerate((20, 21, 22, 23)):
        e(f"v_lshlrev_b32 v{X+2*i}, 16, v{r}"); e(f"v_and_b32 v{X+2*i+1}, s39, v{r}")
    e(f"v_lshlrev_b32 v{X+8}, 16, v28")
    layernorm(X, T)
    for i in range(9): e(f"v_cvt_pk_bf16_f32 v{T+i}, v{X+i}, v{X+i}")
    e("v_lshlrev_b32 v14, 4, v0"); e("v_lshlrev_b32 v18, 2, v0")
    e(f"ds_write_b128 v14, {v4(T)} offset:{L_XN}"); e(f"ds_write_b128 v14, {v4(T+4)} offset:{L_XN+1024}"); e(f"ds_write_b32 v18, v{T+8} offset:{L_XN+2048}")
    e("s_lshr_b32 s46, s23, 2"); e(f"s_mul_i32 s46, s46, {144*4}"); e("v_lshrrev_b32 v14, 3, v0"); e("v_lshl_add_u32 v14, v14, 2, s46")
    for t in range(18): e(f"ds_read_b32 v{140+t}, v14 offset:{L_XN+32*t}")
    e("s_waitcnt lgkmcnt(0)")
    e("s_add_u32 s28, s28, 1")
    for t in range(18):
        A = 20 + 4 * (t % 2)
        for r in range(4): e(f"v_and_b32 v{A+r}, v{4+r}, v{140+t}")
        e(f"s_waitcnt vmcnt({17-t+NPW})")
        e(f"v_mfma_f32_16x16x32_bf16 v[32:35], {v4(A)}, {v4(WQ+4*t)}, {'0' if t == 0 else 'v[32:35]'}")
    e("v_add_u32 v14, 40, v0"); e("v_and_b32 v14, 63, v14"); e("v_lshlrev_b32 v14, 2, v14")
    for r in range(4): e(f"ds_bpermute_b32 v{36+r}, v14, v{32+r}")
    e("v_mov_b32 v41, s28"); e("v_mov_b32 v43, s28"); e("v_mov_b32 v45, s28"); e("v_mov_b32 v47, s28")
    e("s_waitcnt lgkmcnt(0)")
    for r in range(4): e(f"v_add_f32 v{40+2*r}, v{32+r}, v{36+r}")
    if FA: pubA(60, 40, "")
    else: pubA(40, 40, "sc1")
    ts("qpub")
    e("v_lshlrev_b32 v8, 4, v0"); sadd(42, 40, 4096)
    poll("A", [f"global_load_dwordx4 {v4(64+4*i)}, v8, s[42:43] offset:{i*1024-4096} sc1" for i in range(8)],
         [64 + 2 * i + 1 for i in range(16)], 20, 32, ([42], lambda: pubA(40, 40, "sc1")) if FA else None)
    ts("qgot")
    if diag: e("s_mov_b32 s66, s30")
    for h in range(2):
        for k in (0, 2):
            a = 64 + 4 * h + k
            e(f"v_add_f32 v{a}, v{a}, v{a+8}"); e(f"v_add_f32 v{a}, v{a}, v{a+16}"); e(f"v_add_f32 v{a}, v{a}, v{a+24}")
        e(f"v_cvt_pk_bf16_f32 v{20+h}, v{64+4*h}, v{66+4*h}")
    e("v_lshlrev_b32 v18, 2, v0")
    e(f"ds_write_b32 v18, v20 offset:{L_Q}"); e(f"ds_write_b32 v18, v21 offset:{L_Q+256}")
    e("s_waitcnt lgkmcnt(0)"); e("s_barrier")
    ts("B2")
    if FA: late_slow("A", lambda: pubA(40, 40, "sc1"))
    e("s_lshl_b32 s46, s22, 2"); e("s_add_u32 s46, s46, s23"); e("s_lshl_b32 s46, s46, 12"); e(f"s_add_u32 s46, s46, {WS_B}"); sadd(42, 26, "s46")
    e("s_lshl_b32 s46, s22, 8"); e("s_lshr_b32 s49, s23, 1"); e("s_lshl_b32 s49, s49, 7"); e("s_add_u32 s46, s46, s49"); e(f"s_add_u32 s46, s46, {WS_BS}"); sadd(44, 26, "s46")
    e("v_and_b32 v19, 3, v0"); e("v_lshl_add_u32 v163, v19, 2, v1"); e("v_lshlrev_b32 v163, 3, v163")
    e("v_lshlrev_b32 v164, 4, v19"); e("v_bfe_u32 v19, v0, 2, 1"); e("v_lshl_add_u32 v164, v19, 3, v164"); e("v_lshl_add_u32 v164, v1, 1, v164"); e("v_bfe_u32 v19, v0, 3, 1"); e("v_lshl_add_u32 v164, v19, 6, v164")
    e("s_cmp_lt_u32 s2, 64"); e("s_cbranch_scc0 L_c_nwo")
    for i in range(8): wo_dma(i)
    bl = lambda a, b, R: [f"global_load_dwordx2 {v2(R+16)}, v163, s[{b}:{b+1}] sc1"] + [f"global_load_dwordx4 {v4(R+4*i)}, v8, s[{a}:{a+1}] offset:{1024*i} sc1" for i in range(4)]
    if WARM and FB:
        sadd(52, 42, FAST); sadd(54, 44, FAST)
        for l in bl(52, 54, 116): e(l)
    e("s_branch L_c_w")
    e("L_c_nwo:")
    if EW >= 0:
        e("s_cmp_lt_u32 s2, 208"); e("s_cbranch_scc0 L_c_w")
        for w in range(EW + 1):
            for i in range(4): w1_dma(i + 8 * w)
        for i in range(4): w2_dma(i)
    e("L_c_w:")
    e("v_lshrrev_b32 v14, 5, v0"); e("v_lshlrev_b32 v14, 5, v14"); e("v_mov_b32 v29, s28")
    walk("CB", [0])
    e("s_barrier")
    mark("@begin CB")
    e(f"ds_read_b128 v[20:23], v14 offset:{L_MAX}"); e(f"ds_read_b128 v[24:27], v14 offset:{L_MAX+16}")
    e("s_waitcnt lgkmcnt(0)")
    e("v_max3_f32 v20, v20, v21, v22"); e("v_max3_f32 v23, v23, v24, v25"); e("v_max3_f32 v20, v20, v26, v27"); e("v_max_f32 v20, v20, v23")
    e("v_bfi_b32 v56, s38, v20, v29")
    e("s_barrier")
    ts("B4")
    for w in range(8): e(f"ds_read_b128 {v4(64+4*w)}, v8 offset:{L_PV+1024*w}")
    e(f"ds_read_b128 v[20:23], v14 offset:{L_L}"); e(f"ds_read_b128 v[24:27], v14 offset:{L_L+16}")
    for st in (4, 8, 16):
        if st == 4: e("s_waitcnt lgkmcnt(2)" if not diag else "s_waitcnt lgkmcnt(0)")
        for w in range(0, 32, 2 * st):
            for k in (0, 2): e(f"v_pk_add_f32 {v2(64+w+k)}, {v2(64+w+k)}, {v2(64+w+st+k)}")
    for r in range(4): e(f"v_bfi_b32 v{60+r}, s38, v{64+r}, v29")
    if FB: pubB(62, 60, "")
    else: pubB(56, 60, "sc1")
    e("s_waitcnt lgkmcnt(0)")
    e("v_pk_add_f32 v[20:21], v[20:21], v[22:23]"); e("v_pk_add_f32 v[24:25], v[24:25], v[26:27]"); e("v_pk_add_f32 v[20:21], v[20:21], v[24:25]"); e("v_add_f32 v20, v20, v21")
    e("v_bfi_b32 v57, s38, v20, v29")
    if FB: pubBS(14, 56, "")
    else: pubBS(58, 56, "sc1")
    def slowB(): pubB(56, 60, "sc1"); pubBS(58, 56, "sc1")
    mark("@end CB")
    ts("Bpub")
    e("s_cmp_lt_u32 s2, 64"); e("s_cbranch_scc1 L_wo")
    if FB: slowB()
    if EW > 0: e(f"s_waitcnt vmcnt({4 + (4 if FB else 2)})")
    e("s_barrier")
    e("s_cmp_lt_u32 s2, 208"); e("s_cbranch_scc1 L_mlp")
    e("s_branch L_red")
    e("L_comp1:")
    def attention(nt, wo):
        sq, ke = seq(nt, wo); P = min(ke + D + PX, len(sq))
        for i in range(D, P):
            e(f"s_waitcnt vmcnt({D-1})"); sq[i]()
        e("v_lshrrev_b32 v14, 3, v2"); e("v_lshlrev_b32 v18, 8, v14"); e("v_lshl_add_u32 v18, v1, 6, v18"); e("v_and_b32 v19, 3, v0"); e("v_lshl_add_u32 v18, v19, 4, v18")
        e("v_lshlrev_b32 v14, 5, v14"); e("s_lshl_b32 s46, s3, 2"); e("s_sub_u32 s46, s46, 4"); e("v_add_u32 v19, s46, v14")
        e("s_waitcnt lgkmcnt(0)"); e("s_add_u32 s28, s28, 1"); e("v_mov_b32 v29, s28")
        e("s_barrier")
        e(f"ds_read_b128 v[20:23], v18 offset:{L_Q}")
        for i in range(P, len(sq)): sq[i]()
        e("s_waitcnt lgkmcnt(0)")
        D_, S, C = 124, 32, 42
        R = range(nt)
        for t in R:
            if ke - nt + t >= P - D: e(f"s_waitcnt vmcnt({2*nt-1-t})")
            e(f"v_mfma_f32_16x16x32_bf16 {v4(D_+4*t)}, {v4(KR+4*t)}, v[20:23], 0")
        for t in R: e(f"v_cndmask_b32 v{S+t}, v{D_+4*t}, v{D_+4*t+1}, s[32:33]")
        for t in R: e(f"v_cndmask_b32 v{S+t}, v{S+t}, v{D_+4*t+2}, s[34:35]")
        for t in R: e(f"v_cndmask_b32 v{S+t}, v{S+t}, v{D_+4*t+3}, s[36:37]")
        for t in R: e(f"v_add_f32_dpp v{S+t}, v{S+t}, v{S+t} quad_perm:[1,0,3,2] {DPP}")
        for t in R: e(f"v_add_f32_dpp v{S+t}, v{S+t}, v{S+t} quad_perm:[2,3,0,1] {DPP}")
        for rnd in range(2):
            for t in range(0, nt, 2): e(f"v_cvt_pk_bf16_f32 v{C+t//2}, v{S+t}, v{S+min(t+1,nt-1)}")
            for t in range(0, nt, 2):
                e(f"v_lshlrev_b32 v{S+t}, 16, v{C+t//2}")
                if t + 1 < nt: e(f"v_and_b32 v{S+t+1}, s39, v{C+t//2}")
            if rnd == 0:
                for t in R: e(f"v_mul_f32 v{S+t}, 0x3db504f3, v{S+t}")
        e(f"v_max3_f32 v{C}, v{S}, v{S+1}, v{S+2}")
        for t in range(3, nt, 2): e(f"v_max3_f32 v{C}, v{C}, v{S+t}, v{S+t+1}")
        rows_allreduce("v_max_f32", C, C + 1)
        e("s_mov_b64 exec, 0x101"); e(f"ds_write_b32 v19, v{C} offset:{L_MAX}"); e("s_mov_b64 exec, -1")
        e("s_waitcnt lgkmcnt(0)"); e("s_barrier")
        e(f"ds_read_b128 v[20:23], v14 offset:{L_MAX}"); e(f"ds_read_b128 v[24:27], v14 offset:{L_MAX+16}")
        e("s_waitcnt lgkmcnt(0)")
        e("v_max3_f32 v20, v20, v21, v22"); e("v_max3_f32 v23, v23, v24, v25"); e("v_max3_f32 v20, v20, v26, v27"); e("v_max_f32 v20, v20, v23")
        for t in R: e(f"v_sub_f32 v{S+t}, v{S+t}, v20")
        for t in R: e(f"v_mul_f32 v{S+t}, {LOG2E}, v{S+t}")
        for t in R: e(f"v_exp_f32 v{S+t}, v{S+t}")
        e(f"v_add_f32 v{C}, v{S}, v{S+1}")
        for t in range(2, nt): e(f"v_add_f32 v{C}, v{C}, v{S+t}")
        for t in R: e(f"v_cvt_pk_bf16_f32 v{S+t}, v{S+t}, v{S+t}")
        rows_allreduce("v_add_f32", C, C + 1)
        for t in R:
            for r in range(4): e(f"v_and_b32 v{D_+4*t+r}, v{4+r}, v{S+t}")
        e("s_mov_b64 exec, 0x101"); e(f"ds_write_b32 v19, v{C} offset:{L_L}"); e("s_mov_b64 exec, -1")
        e("s_lshl_b32 s46, s3, 10"); e("v_add_u32 v18, s46, v8")
        for t in R:
            e(f"s_waitcnt vmcnt({nt-1-t})")
            e(f"v_mfma_f32_16x16x32_bf16 v[20:23], {v4(D_+4*t)}, {v4(VR+4*t)}, {'0' if t == 0 else 'v[20:23]'}")
        e(f"ds_write_b128 v18, v[20:23] offset:{L_PV-1024}")
        e("s_waitcnt lgkmcnt(0)"); e("s_barrier")
    e("s_cmp_lt_u32 s2, 64"); e("s_cbranch_scc0 L_a_notwo")
    attention(5, True); e("s_branch L_wo")
    e("L_a_notwo:")
    attention(9, False)
    e("s_barrier")
    e("s_cmp_lt_u32 s2, 208"); e("s_cbranch_scc1 L_mlp")
    if PFW & 1:
        e("s_cmp_eq_u32 s3, 8"); e("s_cbranch_scc0 L_npf1")
        per = (576 - R0) * 9 // 6; nk = -(-per // 64)
        e("s_load_dwordx2 s[16:17], s[0:1], 48")
        e("s_sub_u32 s46, s2, 208"); e("s_lshr_b32 s46, s46, 3"); e(f"s_mul_i32 s46, s46, {per}"); e("s_and_b32 s48, s2, 7"); e("s_mul_i32 s48, s48, 1152"); e(f"s_add_u32 s48, s48, {R0*9216}")
        e("s_waitcnt lgkmcnt(0)"); sadd(16, 16, "s48")
        for k in range(nk):
            e(f"v_add_u32 v14, {64*k}, v0"); e(f"v_min_u32 v14, {per-1}, v14"); e("v_add_u32 v14, s46, v14")
            e("v_mul_u32_u24 v18, 7282, v14"); e("v_lshrrev_b32 v18, 16, v18"); e("v_mul_u32_u24 v18, 63, v18"); e("v_add_u32 v14, v14, v18"); e("v_lshlrev_b32 v14, 7, v14")
            e(f"global_load_dword v{32+k}, v14, s[16:17] {PFF}")
        e("s_waitcnt vmcnt(0)")
        e("L_npf1:")
    e("s_cmp_lt_u32 s3, 6"); e("s_cbranch_scc0 L_end")
    e("s_branch L_red")
    def tr_addr(base_s, off):
        e("v_lshrrev_b32 v14, 2, v2"); e("v_lshl_add_u32 v14, v1, 2, v14")
        e("v_bfe_u32 v18, v14, 1, 2"); e("v_lshlrev_b32 v18, 1, v18")
        e("v_lshlrev_b32 v14, 7, v14"); e(f"v_add_u32 v14, {base_s}, v14")
        e("v_and_b32 v19, 3, v0"); e("v_lshlrev_b32 v19, 1, v19"); e("v_xor_b32 v19, v19, v18")
        e("v_lshl_add_u32 v20, v19, 4, v14"); e("v_add_u32 v21, 8, v20"); e("v_add_u32 v22, 16, v20"); e("v_add_u32 v23, 24, v20")
    def pub_addr(nrec, wsoff, prod):
        e("s_lshl_b32 s46, s3, 2"); e("v_add_u32 v14, s46, v1")
        e(f"v_mul_u32_u24 v28, {nrec*64}, v14"); e("v_lshl_add_u32 v28, v2, 4, v28")
        e(f"s_lshl_b32 s46, {prod}, 6"); e(f"s_add_u32 s46, s46, {wsoff}"); sadd(40, 26, "s46")
    def publish(acc):
        for t, m in ((1, 32), (2, 34), (3, 36)):
            for r in range(4): e(f"v_cndmask_b32 v{acc+r}, v{acc+r}, v{acc+4*t+r}, s[{m}:{m+1}]")
        for r in range(4): e(f"v_bfi_b32 v{acc+r}, s38, v{acc+r}, v29")
        e("s_mov_b32 exec_lo, 0x000f000f"); e("s_mov_b32 exec_hi, 0x000f000f")
        e(f"global_store_dwordx4 v28, {v4(acc)}, s[40:41] {SF.replace('_',' ')}"); e("s_mov_b64 exec, -1")
    e("L_wo:")
    walk("WO", range(1, 9))
    tr_addr("s47", 0); pub_addr(64, WS_C1, "s2")
    e("v_lshlrev_b32 v24, 4, v1")
    e("s_waitcnt vmcnt(0)" if not FB else "s_waitcnt vmcnt(2)")
    ts("Wgot")
    for t in range(4):
        for k in range(4): e(f"ds_read_b64_tr_b16 {v2(64+8*t+2*k)}, v{20+t} offset:{2048*k}")
    e("s_cmp_eq_u32 s96, 0"); e("s_cbranch_scc0 L_wo_b5")
    poll2("B", lambda R: bl(42, 44, R), 18, 96, [116, 136], 8, ([42, 44], slowB) if FB else None)
    ts("Bgot")
    mark("@begin WO")
    if diag: e("s_lshl_b32 s31, s30, 8"); e("s_or_b32 s66, s66, s31")
    e(f"v_max_f32_dpp v40, v112, v112 quad_perm:[1,0,3,2] {DPP}")
    e(f"v_max_f32_dpp v40, v40, v40 quad_perm:[2,3,0,1] {DPP}")
    rows_allreduce("v_max_f32", 40, 41)
    e("v_sub_f32 v112, v112, v40")
    e(f"v_mul_f32 v112, {LOG2E}, v112")
    e("v_exp_f32 v112, v112")
    e("v_mul_f32 v40, v112, v113")
    for r in range(4): e(f"v_mul_f32_dpp v{96+r}, v112, v{96+r} quad_perm:[0,0,0,0] {DPP}")
    e(f"v_add_f32_dpp v40, v40, v40 quad_perm:[1,0,3,2] {DPP}")
    for r in range(4): e(f"v_fmac_f32_dpp v{96+r}, v112, v{100+r} quad_perm:[1,1,1,1] {DPP}")
    e(f"v_add_f32_dpp v40, v40, v40 quad_perm:[2,3,0,1] {DPP}")
    for r in range(4): e(f"v_fmac_f32_dpp v{96+r}, v112, v{104+r} quad_perm:[2,2,2,2] {DPP}")
    for r in range(4): e(f"v_fmac_f32_dpp v{96+r}, v112, v{108+r} quad_perm:[3,3,3,3] {DPP}")
    rows_allreduce("v_add_f32", 40, 41)
    e("v_rcp_f32 v40, v40")
    red4(96, ())
    e("v_mul_f32 v96, v96, v40"); e("v_cvt_pk_bf16_f32 v96, v96, v96")
    e(f"ds_write_b16 v164, v96 offset:{L_XF}")
    e("L_wo_b5:")
    e("s_waitcnt lgkmcnt(0)"); e("s_barrier")
    ts("B5")
    e(f"ds_read_b128 v[96:99], v24 offset:{L_XF}"); e(f"ds_read_b128 v[100:103], v24 offset:{L_XF+64}")
    for k in range(2):
        e(f"s_waitcnt lgkmcnt({1-k})" if not diag else "s_waitcnt lgkmcnt(0)")
        for t in range(4): e(f"v_mfma_f32_16x16x32_bf16 {v4(32+4*t)}, {v4(64+8*t+4*k)}, {v4(96+4*k)}, {'0' if k == 0 else v4(32+4*t)}")
    publish(32)
    mark("@end WO")
    ts("C1pub")
    if PFW & 2:
        e("s_barrier"); e("s_cmp_eq_u32 s3, 8"); e("s_cbranch_scc0 L_npf2")
        e("s_load_dwordx2 s[18:19], s[0:1], 56")
        e("s_lshr_b32 s46, s2, 3"); e("s_mul_i32 s46, s46, 72"); e("s_and_b32 s48, s2, 7"); e("s_mul_i32 s48, s48, 576"); e("s_add_u32 s46, s46, s48"); e("s_mul_i32 s46, s46, 1152"); e("s_add_u32 s46, s46, 640")
        e("s_waitcnt lgkmcnt(0)"); sadd(18, 18, "s46")
        for k in range(5):
            e(f"v_add_u32 v14, {64*k}, v0"); e("v_min_u32 v14, 287, v14"); e("v_lshrrev_b32 v18, 2, v14"); e("v_mul_u32_u24 v18, 1152, v18"); e("v_and_b32 v14, 3, v14"); e("v_lshl_add_u32 v14, v14, 7, v18")
            e(f"global_load_dword v{48+k}, v14, s[18:19] {PFF}")
        e("s_waitcnt vmcnt(0)")
        e("L_npf2:")
    e("s_cmp_eq_u32 s96, 0"); e("s_cbranch_scc0 L_end")
    if FB: late_slow("B", slowB)
    e("s_branch L_end")
    e("L_red:")
    e("s_sub_u32 s29, s2, 208"); e("s_lshr_b32 s29, s29, 3"); e("s_mul_i32 s29, s29, 6"); e("s_add_u32 s29, s29, s3")
    if not XR: e("s_and_b32 s46, s29, 7"); e("s_and_b32 s48, s2, 7"); e("s_cmp_eq_u32 s46, s48"); e("s_cbranch_scc0 L_end")
    e("s_lshl_b32 s49, s29, 5"); e("v_and_b32 v18, 3, v0"); e("v_lshl_add_u32 v16, v18, 2, v1"); e("v_lshl_add_u32 v16, v16, 1, s49")
    e("global_load_ushort v17, v16, s[4:5]")
    e("v_lshl_add_u32 v16, v18, 3, s49")
    e("s_lshl_b32 s46, s29, 12"); e(f"s_add_u32 s46, s46, {WS_C1+4096}"); sadd(42, 26, "s46")
    e("s_and_b32 s48, s2, 7"); e("s_lshl_b32 s46, s48, 6"); e("s_add_u32 s46, s46, s29"); e("s_lshl_b32 s46, s46, 6"); e(f"s_add_u32 s46, s46, {WS_C2}"); sadd(44, 26, "s46"); sadd(52, 44, FAST)
    e("v_lshlrev_b32 v14, 4, v18")
    if not XR:
        e("s_lshl_b32 s46, s29, 6"); e(f"s_add_u32 s46, s46, {WS_C2}"); sadd(44, 26, "s46")
        e("v_lshrrev_b32 v14, 2, v0"); e("v_lshlrev_b32 v14, 12, v14"); e("v_lshl_add_u32 v14, v18, 4, v14")
    e("v_subrev_u32 v20, 1, v29"); e("v_mov_b32 v21, v20"); e("v_mov_b32 v22, v20"); e("v_mov_b32 v23, v20")
    if XR: e("s_mov_b64 exec, 15"); e("global_store_dwordx4 v14, v[20:23], s[52:53]"); e("s_mov_b64 exec, -1")
    if PT: e("global_load_ushort v24, v16, s[20:21]")
    e("s_waitcnt vmcnt(0)"); e("v_lshlrev_b32 v17, 16, v17"); e("v_add_u32 v19, 1024, v8")
    def untr(a):
        e(f"v_mov_b32 v{a+1}, v{a}"); e(f"v_permlane16_swap_b32 v{a}, v{a+1}")
        e(f"v_mov_b32 v{a+2}, v{a}"); e(f"v_mov_b32 v{a+3}, v{a+1}"); e(f"v_permlane32_swap_b32 v{a}, v{a+2}"); e(f"v_permlane32_swap_b32 v{a+1}, v{a+3}")
    def gather_sum(name, n):
        mk = lambda R: [f"global_load_dwordx4 {v4(R+4*i)}, v{8 if i < 8 else 19}, s[42:43] offset:{1024*min(i,7)-4096} {LF.replace('_',' ')}" for i in range(n)]
        poll2(name, mk, 4 * n, 96, [132, 44] if n == 9 else [80, 112], 8)
        if name == "C1": ts("C1got")
        else: ts("B5")
        if diag: e(f"s_lshl_b32 s31, s30, {16 if name == 'C1' else 24}"); e("s_or_b32 s66, s66, s31")
        for a, b in ((0, 1), (2, 3), (0, 2)) if n == 4 else ((0, 1), (2, 3), (4, 5), (6, 7), (0, 8), (2, 4), (0, 6), (0, 2)):
            for k in (0, 2): e(f"v_pk_add_f32 {v2(96+4*a+k)}, {v2(96+4*a+k)}, {v2(96+4*b+k)}")
        red4(96, (8, 4))
        rbf(96, 96)
        e("v_add_f32 v17, v17, v96")
    mark("@begin RD")
    gather_sum("C1", 4)
    e("v_cvt_pk_bf16_f32 v17, v17, v17"); e("v_bfi_b32 v20, s39, v17, v29")
    untr(20)
    if XR: e("s_mov_b64 exec, 15"); e("global_store_dwordx4 v14, v[20:23], s[52:53]"); e("global_store_dwordx4 v14, v[20:23], s[44:45] sc1"); e("s_mov_b64 exec, -1")
    else: e("s_mov_b32 exec_hi, 0"); e(f"global_store_dwordx4 v14, v[20:23], s[44:45] {SF.replace('_',' ')}"); e("s_mov_b64 exec, -1")
    e("s_and_b32 s46, s29, 7"); e("s_cmp_eq_u32 s46, s48"); e("s_cbranch_scc0 L_end")
    e("v_and_b32 v17, s39, v17")
    e(f"s_mul_i32 s46, s29, {144*64}"); e(f"s_add_u32 s46, s46, {WS_D+4096}"); sadd(42, 26, "s46")
    gather_sum("D", 9)
    e("v_mov_b32 v20, v17"); untr(20)
    e("v_cvt_pk_bf16_f32 v20, v20, v21"); e("v_cvt_pk_bf16_f32 v21, v22, v23")
    e("s_mov_b64 exec, 15")
    e("global_store_dwordx2 v16, v[20:21], s[20:21]")
    mark("@end RD")
    e("s_cmp_eq_u32 s29, 0"); e("s_cbranch_scc0 L_end")
    e("s_mov_b64 exec, 1"); e("v_mov_b32 v14, 0"); e("global_store_dword v14, v29, s[26:27] sc1")
    e("s_branch L_end")
    e("L_mlp:")
    if EW >= 0: e(f"s_cmp_le_u32 s3, {EW}"); e("s_cbranch_scc1 L_mlp_w2")
    for i in range(4): w1_dma(i)
    e("L_mlp_w2:")
    if WO: e("s_barrier")
    if EW >= 0: e("s_cmp_eq_u32 s96, 0"); e("s_cbranch_scc1 L_mlp_wd")
    for i in range(4): w2_dma(i)
    e("L_mlp_wd:")
    walk("ML", range(1, 9))
    e("s_add_u32 s48, s47, 4096"); tr_addr("s48", 0)
    pub_addr(144, WS_D, "s29")
    e("v_lshrrev_b32 v14, 2, v2"); e("v_lshl_add_u32 v14, v1, 2, v14"); e("v_lshlrev_b32 v30, 6, v14"); e("v_and_b32 v14, 3, v0"); e("v_lshl_add_u32 v30, v14, 3, v30"); e("v_add_u32 v30, s47, v30")
    e("s_lshl_b32 s46, s3, 7"); e("v_lshlrev_b32 v31, 4, v1"); e("v_add_u32 v31, s46, v31")
    e("v_bfe_u32 v33, v0, 2, 1"); e("v_lshlrev_b32 v33, 2, v33"); e("v_add_u32 v33, v33, v1"); e("v_lshl_add_u32 v33, v33, 2, v14"); e("v_lshlrev_b32 v33, 2, v33")
    W1F, W2F = 64, 96
    e("s_waitcnt vmcnt(4)")
    for ks in range(2):
        for t in range(2):
            r = W1F + 4 * (2 * ks + t); o = ks * 2048 + 32 * t
            e(f"ds_read_b64_tr_b16 {v2(r)}, v30 offset:{o}"); e(f"ds_read_b64_tr_b16 {v2(r+2)}, v30 offset:{o+1024}")
    def w2f():
        e("s_waitcnt vmcnt(0)")
        ts("Wgot")
        for t in range(4):
            for k in range(2): e(f"ds_read_b64_tr_b16 {v2(W2F+4*t+2*k)}, v{20+t} offset:{2048*k}")
    if not W2L: w2f()
    def ysum():
        for a, b in ((44, 45), (46, 47), (48, 49), (50, 51), (44, 46), (48, 50), (44, 52), (44, 48)): e(f"v_add_f32 v{a}, v{a}, v{b}")
    def ymm(B, off):
        for ks in range(2):
            for t in range(2): e(f"v_mfma_f32_16x16x32_bf16 {v4(44+4*t)}, {v4(W1F+4*(2*ks+t))}, {v4(B[ks])}, {'0' if ks == 0 else v4(44+4*t)}")
    def ywr(off):
        e("s_mov_b32 exec_lo, 0x00010001"); e("s_mov_b32 exec_hi, 0x00010001")
        for t in range(2): e(f"ds_write_b128 v31, {v4(44+4*t)} offset:{off+64*t}")
    if LT:
        for r in range(4): e(f"v_mov_b32 v{144+r}, 0x3f803f80")
        e("s_lshl_b32 s46, s3, 3"); e(f"s_add_u32 s46, s46, {L_H1}"); e("v_mov_b32 v61, s46"); e(f"v_mov_b32 v62, {L_H1}"); e("v_mov_b32 v63, 0x3ae38e39")
        e("s_waitcnt lgkmcnt(0)")
        ymm([144, 144], 0); ywr(L_H1 + 256); e("s_mov_b64 exec, -1")
        e("s_cmp_eq_u32 s96, 0"); e("s_cbranch_scc0 L_mlp_b5")
        e("s_and_b32 s46, s2, 7"); e("s_lshl_b32 s46, s46, 12"); e(f"s_add_u32 s46, s46, {WS_C2}"); sadd(42, 26, "s46")
        e("v_lshlrev_b32 v9, 2, v0")
        e("v_lshrrev_b32 v19, 3, v0"); e("v_lshlrev_b32 v18, 6, v19"); e("v_lshl_add_u32 v18, v14, 4, v18"); e("v_bfe_u32 v19, v0, 2, 1"); e("v_lshl_add_u32 v18, v19, 3, v18")
        e("v_bfe_u32 v34, v0, 2, 2"); e("v_lshlrev_b32 v19, 4, v34"); e("v_bfe_u32 v34, v0, 4, 1"); e("v_lshl_add_u32 v19, v34, 3, v19"); e("v_lshl_add_u32 v19, v14, 1, v19")
        e("v_lshrrev_b32 v34, 5, v0"); e("v_lshl_add_u32 v19, v34, 6, v19")
        X, T = 128, 138
        poll2("C2", lambda R: [f"global_load_dwordx4 {v4(R)}, v8, s[42:43] sc1", f"global_load_dwordx4 {v4(R+4)}, v8, s[42:43] offset:1024 sc1", f"global_load_dword v{R+8}, v9, s[42:43] offset:2048 sc1"],
              9, X, [112, 80], 16, None)
        ts("C2got")
        mark("@begin ML")
        if diag: e("s_lshl_b32 s31, s30, 8"); e("s_or_b32 s66, s66, s31")
        for i in range(4): e(f"v_cvt_pk_bf16_f32 v{T+i}, v{X+2*i}, v{X+2*i+1}")
        e(f"ds_write_b64 v18, {v2(T)} offset:{L_HN}"); e(f"ds_write_b64 v18, {v2(T+2)} offset:{L_HN+512}"); e(f"ds_write_b16_d16_hi v19, v{X+8} offset:{L_HN+1024}")
        e("L_mlp_b5:")
        e("s_waitcnt lgkmcnt(0)"); e("s_barrier")
        ts("B5")
        e(f"ds_read_b128 v[36:39], v31 offset:{L_HN}"); e(f"ds_read_b128 v[40:43], v31 offset:{L_HN+64}")
        for w in range(9): e(f"ds_read_b32 v{150+w}, v33 offset:{L_H1+256+128*w}")
        e("s_waitcnt lgkmcnt(9)" if not diag else "s_waitcnt lgkmcnt(0)")
        ymm([36, 40], 0)
        for ks in range(2):
            e(f"v_mfma_f32_16x16x32_bf16 v[52:55], {v4(36+4*ks)}, {v4(36+4*ks)}, {'0' if ks == 0 else 'v[52:55]'}")
            e(f"v_mfma_f32_16x16x32_bf16 v[56:59], {v4(36+4*ks)}, v[144:147], {'0' if ks == 0 else 'v[56:59]'}")
        ywr(L_Y); e("ds_write2_b32 v61, v52, v56 offset0:0 offset1:1"); e("s_mov_b64 exec, -1")
        e("s_waitcnt lgkmcnt(0)"); e("s_barrier")
        for i in range(4): e(f"ds_read_b128 {v4(X+4*i)}, v62 offset:{16*i}")
        e("ds_read_b64 v[148:149], v62 offset:64")
        for w in range(9): e(f"ds_read_b32 v{44+w}, v33 offset:{L_Y+128*w}")
        for a, b in ((0, 1), (2, 3), (4, 5), (6, 7), (0, 2), (4, 6), (0, 8), (0, 4)): e(f"v_add_f32 v{150+a}, v{150+a}, v{150+b}")
        e("s_waitcnt lgkmcnt(9)")
        for a, b in ((0, 2), (4, 6), (8, 10), (12, 14), (0, 4), (8, 12), (0, 20), (0, 8)): e(f"v_pk_add_f32 {v2(X+a)}, {v2(X+a)}, {v2(X+b)}")
        e(f"v_mul_f32 v{X+1}, v{X+1}, v63"); e(f"v_mul_f32 v{X}, v{X}, v63")
        e(f"v_fma_f32 v{X}, -v{X+1}, v{X+1}, v{X}"); e(f"v_max_f32 v{X}, 0, v{X}")
        rbf(X, X); e(f"v_add_f32 v{X}, 0x3727c5ac, v{X}"); rbf(X, X); e(f"v_sqrt_f32 v{X}, v{X}")
        rbf(X + 1, X + 1)
        e("s_waitcnt lgkmcnt(0)")
        ysum()
        rbf(X, X); e(f"v_rcp_f32 v{X}, v{X}")
        e(f"v_fma_f32 v44, -v{X+1}, v150, v44"); e(f"v_mul_f32 v44, v44, v{X}")
    else:
        e("s_cmp_eq_u32 s96, 0"); e("s_cbranch_scc0 L_mlp_b5")
        e("s_and_b32 s46, s2, 7"); e("s_lshl_b32 s46, s46, 12"); e(f"s_add_u32 s46, s46, {WS_C2}"); sadd(42, 26, "s46")
        e("v_lshlrev_b32 v9, 2, v0")
        e("v_lshrrev_b32 v19, 3, v0"); e("v_lshlrev_b32 v18, 6, v19"); e("v_lshl_add_u32 v18, v14, 4, v18"); e("v_bfe_u32 v19, v0, 2, 1"); e("v_lshl_add_u32 v18, v19, 3, v18")
        e("v_bfe_u32 v34, v0, 2, 2"); e("v_lshlrev_b32 v19, 4, v34"); e("v_bfe_u32 v34, v0, 4, 1"); e("v_lshl_add_u32 v19, v34, 3, v19"); e("v_lshl_add_u32 v19, v14, 1, v19")
        e("v_lshrrev_b32 v34, 5, v0"); e("v_lshl_add_u32 v19, v34, 6, v19")
        X, T = 128, 140
        poll2("C2", lambda R: [f"global_load_dwordx4 {v4(R)}, v8, s[42:43] sc1", f"global_load_dwordx4 {v4(R+4)}, v8, s[42:43] offset:1024 sc1", f"global_load_dword v{R+8}, v9, s[42:43] offset:2048 sc1"],
              9, X, [112, 80], 16, ([42], lambda: None) if XR else None)
        ts("C2got")
        mark("@begin ML")
        if diag: e("s_lshl_b32 s31, s30, 8"); e("s_or_b32 s66, s66, s31")
        layernorm(X, T, True)
        for i in range(4): e(f"v_cvt_pk_bf16_f32 v{T+i}, v{X+2*i}, v{X+2*i+1}")
        e(f"v_cvt_pk_bf16_f32 v{T+4}, v{X+8}, v{X+8}")
        e(f"ds_write_b64 v18, {v2(T)} offset:{L_HN}"); e(f"ds_write_b64 v18, {v2(T+2)} offset:{L_HN+512}"); e(f"ds_write_b16 v19, v{T+4} offset:{L_HN+1024}")
        e("L_mlp_b5:")
        e("s_waitcnt lgkmcnt(0)"); e("s_barrier")
        ts("B5")
        e(f"ds_read_b128 v[36:39], v31 offset:{L_HN}"); e(f"ds_read_b128 v[40:43], v31 offset:{L_HN+64}")
        for ks in range(2):
            e(f"s_waitcnt lgkmcnt({1-ks})" if not diag else "s_waitcnt lgkmcnt(0)")
            for t in range(2): e(f"v_mfma_f32_16x16x32_bf16 {v4(44+4*t)}, {v4(W1F+4*(2*ks+t))}, {v4(36+4*ks)}, {'0' if ks == 0 else v4(44+4*t)}")
        e("s_mov_b32 exec_lo, 0x00010001"); e("s_mov_b32 exec_hi, 0x00010001")
        for t in range(2): e(f"ds_write_b128 v31, {v4(44+4*t)} offset:{L_Y+64*t}")
        e("s_mov_b64 exec, -1")
        e("s_waitcnt lgkmcnt(0)"); e("s_barrier")
        if W2L: w2f()
        for w in range(9): e(f"ds_read_b32 v{44+w}, v33 offset:{L_Y+128*w}")
        e("s_waitcnt lgkmcnt(0)")
        for a, b in ((44, 45), (46, 47), (48, 49), (50, 51), (44, 46), (48, 50), (44, 52), (44, 48)): e(f"v_add_f32 v{a}, v{a}, v{b}")
    e("v_max_f32 v44, 0, v44")
    e(f"v_mov_b32_dpp v45, v44 quad_perm:[1,0,3,2] {DPP}"); e("v_cvt_pk_bf16_f32 v44, v44, v45")
    for i in range(4): e(f"v_mov_b32_dpp v{36+i}, v44 row_newbcast:{2*i} {DPP}")
    for t in range(4): e(f"v_mfma_f32_16x16x32_bf16 {v4(44+4*t)}, {v4(W2F+4*t)}, v[36:39], 0")
    publish(44)
    mark("@end ML")
    ts("Dpub")
    e("L_end:")
    if diag:
        e("s_mov_b64 exec, -1")
        ts("end"); e("s_waitcnt lgkmcnt(0)")
        for i in range(16): e(f"v_writelane_b32 v1, s{64+2*i}, {i}")
        e("s_mul_i32 s46, s2, 9"); e("s_add_u32 s46, s46, s3"); e("s_lshl_b32 s46, s46, 6"); e(f"s_add_u32 s46, s46, {512<<20}"); sadd(40, 26, "s46")
        e("v_lshlrev_b32 v2, 2, v0"); e("s_mov_b64 exec, 0xffff"); e("global_store_dword v2, v1, s[40:41]")
        if dbgts is not None:
            e(f"s_cmp_eq_u32 s2, {dbgts}"); e("s_cbranch_scc0 L_exit"); e("s_cmp_eq_u32 s96, 0"); e("s_cbranch_scc0 L_exit")
            e("global_store_dword v2, v1, s[24:25]")
    e("L_exit:")
    e("s_endpgm")
    body = "\n".join(walkers(pad([l for l in L]), PADB))
    hdr = open("cdna_kernels/" + KN[:-7] + ".s.ref").read().split("; Override launch")[0]
    hdr += f"; @launch grid=(256,1,1) block=(576,1,1) lds={LDS}\n"
    if diag: hdr += "; @ts " + " ".join(TS) + "\n"
    return hdr + f""".amdgcn_target "amdgcn-amd-amdhsa--gfx950"
.text
.globl {KN}
.p2align 8
.type {KN},@function
{KN}:
{body}
.section .rodata,"a"
.p2align 6
.amdhsa_kernel {KN}
  .amdhsa_next_free_vgpr 168
  .amdhsa_next_free_sgpr 102
  .amdhsa_accum_offset 168
  .amdhsa_group_segment_fixed_size 0
  .amdhsa_kernarg_size 88
  .amdhsa_user_sgpr_count 2
  .amdhsa_user_sgpr_kernarg_segment_ptr 1
  .amdhsa_system_sgpr_workgroup_id_x 1
.end_amdhsa_kernel
"""
if __name__ == "__main__":
    import ast
    if len(sys.argv) > 1:
        for a in sys.argv[1:]:
            n, _, kw = a.partition(":")
            kw = dict((k.split("=")[0], ast.literal_eval(k.split("=")[1])) for k in kw.split(",") if k)
            open(f"exp/{n}.s", "w").write(gen(**kw))
    else:
        open("k_diag.s", "w").write(gen(diag=True))
        open("k_dbg.s", "w").write(gen(diag=True, dbgts=0))
        open("cdna_kernels/" + KN[:-7] + ".s", "w").write(gen())
```
